```python
import torch

def _softmax(x, axis=-1):
    return torch.softmax(x, dim=axis)
def _gelu(x):
    return torch.nn.functional.gelu(x, approximate="tanh")
def _silu(x):
    return torch.nn.functional.silu(x)
def _sigmoid(x):
    return torch.sigmoid(x)
def _layernorm(x, axis=-1, eps=1e-5):
    m = x.mean(dim=axis, keepdim=True)
    v = x.var(dim=axis, keepdim=True, unbiased=False)
    return (x - m) / torch.sqrt(v + eps)
def _scatter_add(tgt, idx, src, axis=0):
    return tgt.clone().index_add_(axis, idx, src)
def _segment_sum(src, seg, n):
    out = torch.zeros((n,) + src.shape[1:], dtype=src.dtype)
    return out.index_add_(0, seg, src)
def _pad(x, pw):
    flat = tuple(v for pair in reversed(pw) for v in pair)
    return torch.nn.functional.pad(x, flat)

kernel_name = 'interleave_layers__spectral_fnet__moe_arch_mod__prompt'

def setup_inputs():

    _w = (lambda a: (lambda t: t.to(torch.bfloat16) if t.is_floating_point() else t)(torch.as_tensor(a)))
    def _A_setup():
        B, S, D = 1, 2048, 512
        ns = torch.arange(S)[:, None] * torch.arange(S)[None, :]
        nd = torch.arange(D)[:, None] * torch.arange(D)[None, :]
        Ws_re = torch.cos(-2.0 * torch.pi * ns / S).to(float)
        Ws_im = torch.sin(-2.0 * torch.pi * ns / S).to(float)
        Wd_re = torch.cos(-2.0 * torch.pi * nd / D).to(float)
        Wd_im = torch.sin(-2.0 * torch.pi * nd / D).to(float)
        return {
            "x": _w((lambda *s: torch.randn(*s, dtype=torch.bfloat16) * 0.05)(B, S, D)),
            "dft_seq_re": _w(Ws_re),
            "dft_seq_im": _w(Ws_im),
            "dft_hid_re": _w(Wd_re),
            "dft_hid_im": _w(Wd_im),
        }
    _A_in = _A_setup()

    def _B_setup():
        B, S, D, F, C = 1, 2048, 512, 1792, 1
        return {
            "x": _w((lambda *s: torch.randn(*s, dtype=torch.bfloat16) * 0.05)(B, S, D)),
            "w_r": _w((lambda *s: torch.randn(*s, dtype=torch.bfloat16) * 1.6)(D)),
            "w_gate": _w((lambda *s: torch.randn(*s, dtype=torch.bfloat16) * 0.4)(D, F)),
            "w_up": _w((lambda *s: torch.randn(*s, dtype=torch.bfloat16) * 0.4)(D, F)),
            "w_down": _w((lambda *s: torch.randn(*s, dtype=torch.bfloat16) * 0.4)(F, D)),
        }
    _B_in = _B_setup()

    return {
        "A_x": _A_in["x"],
        "A_dft_seq_re": _A_in["dft_seq_re"],
        "A_dft_seq_im": _A_in["dft_seq_im"],
        "A_dft_hid_re": _A_in["dft_hid_re"],
        "A_dft_hid_im": _A_in["dft_hid_im"],
        "B_x": _B_in["x"],
        "B_w_r": _B_in["w_r"],
        "B_w_gate": _B_in["w_gate"],
        "B_w_up": _B_in["w_up"],
        "B_w_down": _B_in["w_down"],
    }

def reference(A_x, A_dft_seq_re, A_dft_seq_im, A_dft_hid_re, A_dft_hid_im, B_x, B_w_r, B_w_gate, B_w_up, B_w_down):
    def _A_ref(x, dft_seq_re, dft_seq_im, dft_hid_re, dft_hid_im):
        a = torch.einsum("bsd,ed->bse", x, dft_hid_re)
        b = torch.einsum("bsd,ed->bse", x, dft_hid_im)
        y = torch.einsum("ts,bse->bte", dft_seq_re, a) - torch.einsum("ts,bse->bte", dft_seq_im, b)
        return y

    def _B_ref(x, w_r, w_gate, w_up, w_down):
        B, S, D = x.shape
        C = 1
        r = x @ w_r
        idx = torch.argsort(-r, axis=-1)[:, :C]
        idx_e = (lambda x, n, axis: torch.repeat_interleave(x, n, dim=axis))(idx.reshape(B, C, 1), D, axis=2)
        x_sel = (lambda x, i, axis: torch.take_along_dim(x, i, dim=axis))(x, idx_e, axis=1)
        g = _silu(x_sel @ w_gate)
        u = x_sel @ w_up
        y = (g * u) @ w_down
        r_sel = _sigmoid((lambda x, i, axis: torch.take_along_dim(x, i, dim=axis))(r, idx, axis=1))
        y = y * r_sel.reshape(B, C, 1)
        b_off = (torch.arange(B) * S).reshape(B, 1)
        flat_idx = (idx + b_off).reshape(B * C)
        zero = (x * 0.0).reshape(B * S, D)
        upd = _scatter_add(zero, flat_idx, y.reshape(B * C, D), axis=0)
        return x + upd.reshape(B, S, D)

    x = A_x
    x = x + _A_ref(_layernorm(x, axis=-1), A_dft_seq_re, A_dft_seq_im, A_dft_hid_re, A_dft_hid_im)
    x = x + _B_ref(_layernorm(x, axis=-1), B_w_r, B_w_gate, B_w_up, B_w_down)
    x = x + _A_ref(_layernorm(x, axis=-1), A_dft_seq_re, A_dft_seq_im, A_dft_hid_re, A_dft_hid_im)
    x = x + _B_ref(_layernorm(x, axis=-1), B_w_r, B_w_gate, B_w_up, B_w_down)
    return x
```

```python
import re, struct

def f32(x):
    return "0x%08x" % struct.unpack("<I", struct.pack("<f", x))[0]

TRANS = ("v_exp_f32", "v_log_f32", "v_rcp_f32", "v_rsq_f32", "v_sqrt_f32", "v_sin_f32", "v_cos_f32")

def regs_of(tok):
    tok = tok.strip()
    tok = tok.lstrip("-")
    m = re.fullmatch(r"abs\((.*)\)", tok)
    if m: tok = m.group(1)
    tok = tok.strip("|")
    m = re.fullmatch(r"([vsa])(\d+)", tok)
    if m: return {(m.group(1), int(m.group(2)))}
    m = re.fullmatch(r"([vsa])\[(\d+):(\d+)\]", tok)
    if m: return {(m.group(1), i) for i in range(int(m.group(2)), int(m.group(3)) + 1)}
    if tok == "vcc": return {("s", 106), ("s", 107)}
    if tok == "vcc_lo": return {("s", 106)}
    if tok == "vcc_hi": return {("s", 107)}
    if tok == "exec": return {("s", 126), ("s", 127)}
    if tok == "m0": return {("s", 124)}
    return set()

class Ins:
    __slots__ = ("op", "kind", "wr", "rd", "rdA", "rdC", "dpp", "trans", "wide_store", "lanesel", "dot")

def parse(line):
    line = line.split(";")[0].strip()
    parts = line.split(None, 1)
    op = parts[0]
    rest = parts[1] if len(parts) > 1 else ""
    ops, depth, cur = [], 0, ""
    for ch in rest:
        if ch == "[": depth += 1
        if ch == "]": depth -= 1
        if ch == "," and depth == 0:
            ops.append(cur.strip()); cur = ""
        else:
            cur += ch
    if cur.strip(): ops.append(cur.strip())
    if ops:
        last = ops[-1].split()
        ops[-1] = last[0]
    R = [regs_of(o) for o in ops]
    I = Ins(); I.op = op; I.wr = set(); I.rd = set(); I.rdA = set(); I.rdC = set()
    I.dpp = ("_dpp" in op); I.trans = any(op.startswith(t) for t in TRANS)
    I.wide_store = set(); I.lanesel = set(); I.dot = op.startswith("v_dot")
    U = lambda l: set().union(*l) if l else set()
    if op.startswith("v_mfma"):
        I.kind = "mfma"; I.wr = R[0]; I.rdA = R[1] | R[2]; I.rdC = R[3]; I.rd = I.rdA | I.rdC
    elif op.startswith("v_permlane"):
        I.kind = "perm"; I.wr = R[0] | R[1]; I.rd = R[0] | R[1]
    elif op.startswith("v_readlane") or op.startswith("v_readfirstlane"):
        I.kind = "rdlane"; I.wr = R[0]; I.rd = R[1]
        if len(R) > 2: I.lanesel = R[2]
    elif op.startswith("v_"):
        I.kind = "valu"; I.wr = R[0]; I.rd = U(R[1:])
        if op.startswith(("v_fmac", "v_dot2c", "v_writelane")) or I.dpp or "_sdwa" in op: I.rd |= R[0]
        if op.startswith(("v_add_co", "v_sub_co", "v_addc_co")):
            I.wr = R[0] | R[1]; I.rd = U(R[2:])
    elif op.startswith("ds_read") or op.startswith("ds_bpermute") or op.startswith("ds_swizzle"):
        I.kind = "mem"; I.wr = R[0]; I.rd = U(R[1:])
    elif op.startswith("ds_"):
        I.kind = "mem"; I.rd = U(R)
        if "b128" in op or "b96" in op: I.wide_store = R[1]
    elif op.startswith(("buffer_load", "global_load")):
        I.kind = "mem"
        if " lds" in line or "_lds_" in op: I.rd = U(R) | {("s", 124)}
        else: I.wr = R[0]; I.rd = U(R[1:])
    elif op.startswith(("buffer_store", "buffer_atomic")):
        I.kind = "mem"; I.rd = U(R)
        if "x4" in op or "x3" in op: I.wide_store = R[0]
    elif op.startswith(("global_store", "global_atomic")):
        I.kind = "mem"; I.rd = U(R)
        if "x4" in op or "x3" in op: I.wide_store = R[1]
    elif op.startswith("s_"):
        I.kind = "salu"
        if op.startswith(("s_cmp", "s_cbranch", "s_branch", "s_waitcnt", "s_barrier", "s_nop", "s_sleep", "s_endpgm", "s_setprio", "s_bitcmp", "s_setpc")):
            I.rd = U(R)
        else:
            I.wr = R[0]; I.rd = U(R[1:])
            if "saveexec" in op: I.wr = I.wr | {("s", 126), ("s", 127)}
    else:
        raise ValueError("unknown op " + line)
    return I

def isv(s): return {r for r in s if r[0] in "va"}
def iss(s): return {r for r in s if r[0] == "s"}

def need(p, c):
    n = 0
    pv = p.kind in ("valu", "perm", "rdlane")
    cv = c.kind in ("valu", "perm", "rdlane")
    if pv:
        wv, ws = isv(p.wr), iss(p.wr)
        if wv & c.rd:
            if c.dpp: n = max(n, 2)
            if c.kind == "perm": n = max(n, 2)
            if c.kind == "rdlane": n = max(n, 1)
            if c.kind == "mfma": n = max(n, 2)
            if p.trans and cv and not c.trans: n = max(n, 1)
            if p.trans and c.kind == "mem": n = max(n, 1)
        if p.dot and (wv & (c.rd | c.wr)):
            if not (c.op == p.op and not (wv & (c.rd - c.wr))): n = max(n, 3)
        if ws & c.rd:
            if cv or c.kind == "mfma": n = max(n, 2)
            if c.kind == "mem": n = max(n, 5)
        if ws & c.lanesel: n = max(n, 4)
    if p.kind == "mfma":
        if c.kind == "mfma":
            if p.wr & c.rdA: n = max(n, 8)
            if p.wr & c.rdC and not (p.wr == c.rdC): n = max(n, 6)
            if p.wr & c.wr and not (p.wr == c.rdC): n = max(n, 8)
        else:
            if p.wr & (c.rd | c.wr): n = max(n, 8)
            if cv and (p.rdC & c.wr): n = max(n, 3)
            if c.kind == "mem" and (p.rd & c.wr): n = max(n, 3)
    if p.kind == "mem" and p.wide_store and (p.wide_store & c.wr): n = max(n, 2)
    if p.kind == "salu" and ("s", 124) in p.wr and ("s", 124) in c.rd and c.kind == "mem": n = max(n, 1)
    return n

class Asm:
    def __init__(self):
        self.lines = []
        self.hist = []
        self.snap = {}
        self.vn = 0; self.sn = 0
        self.names = {}
        self.nops = 0
        self.dead = False
    def v(self, name, n=1, align=None):
        al = align or (1 if n == 1 else (2 if n < 4 else 4))
        self.vn = (self.vn + al - 1) // al * al
        r = V(self.vn, n); self.vn += n
        self.names[name] = r
        return r
    def s(self, name, n=1, align=None):
        al = align or (1 if n == 1 else (2 if n < 4 else 4))
        self.sn = (self.sn + al - 1) // al * al
        r = V(self.sn, n, "s"); self.sn += n
        assert self.sn <= 102
        self.names[name] = r
        return r
    def _age(self, k):
        self.hist = [(i, a + k) for (i, a) in self.hist if a + k < 12]
    def raw(self, text):
        self.lines.append(text)
    def label(self, name):
        for h in self.snap.pop(name, []):
            self.hist = self.hist + h
        self.lines.append(name + ":")
    def __call__(self, line):
        for l in line.strip().split("\n"):
            l = l.strip()
            if not l or l.startswith(";"):
                continue
            self._emit(l)
    def _emit(self, l):
        I = parse(l)
        n = 0
        for (p, age) in self.hist:
            n = max(n, need(p, I) - age)
        if n > 0:
            self.lines.append(f"    s_nop {n-1}")
            self.nops += n
            self._age(n)
        self.lines.append("    " + l)
        if I.op == "s_nop":
            self._age(int(l.split()[1]) + 1)
        else:
            self._age(1)
            self.hist.append((I, 0))
        if I.op.startswith(("s_cbranch", "s_branch")):
            tgt = l.split()[1]
            self.snap.setdefault(tgt, []).append(list(self.hist))
            if I.op == "s_branch": self.hist = []
    def text(self):
        return "\n".join(self.lines) + "\n"

class V:
    def __init__(self, base, n=1, k="v"):
        self.b = base; self.n = n; self.k = k
    def __str__(self):
        return f"{self.k}{self.b}" if self.n == 1 else f"{self.k}[{self.b}:{self.b+self.n-1}]"
    def __format__(self, spec): return str(self)
    def __getitem__(self, i):
        if isinstance(i, slice):
            a = i.start or 0; e = i.stop if i.stop is not None else self.n
            assert 0 <= a < e <= self.n
            return V(self.b + a, e - a, self.k)
        assert 0 <= i < self.n, (i, self.n)
        return V(self.b + i, 1, self.k)
```

```python
import sys
from asmlib import *

KN = "interleave_layers__spectral_fnet__moe_arch_mod__prompt_kernel"
NR, NF, NH = 129, 28, 32
NWG = NR + NF + NH
AIN = 8320
WS_A1 = 0
KSTR = 128
WS_K1 = WS_A1 + 128 * AIN
WS_K2 = WS_K1 + 129 * KSTR
ZSTR = 1152
WS_Z1 = WS_K2 + 129 * KSTR
WS_Z2 = WS_Z1 + 129 * ZSTR
WS_P1 = WS_Z2 + 129 * ZSTR
WS_P2 = WS_P1 + 28 * 1024
WS_HEND = WS_P2 + 28 * 1024
HROUNDS = -(-WS_HEND // (NH * 512 * 16))
assert HROUNDS * NH * 512 * 16 <= 0x200000
WS_Y1 = 0x200000
WS_A2 = 0x400000
WS_Y2 = 0x600000
WS_PROF = 0x1000000
WS_SIZE = 0x2000000
L_XB = 0
L_RA = 24576
L_RY = L_RA + 8448
L_CI = L_RY + 8448
PL = 2304
L_CO = L_CI + 4 * PL
PL2 = 4096 + 128
L_YV = L_CO + 2 * PL2
assert L_CI % 256 == 0
LF_G = 0
LF_U = 73728 + 64
LF_D = 0
DSTR = 1024 + 32
L_Z = 147712
L_KMAX = L_Z + 1088
L_H = L_KMAX + 64
LDS_BYTES = L_H + 128
SPIN = 1 << 16
EPS = 1e-5

def build(prof=False, opts=None):
    o = dict(sleepA=0, sleepY=0, sleepP=0, sleepK=0)
    o.update(opts or {})
    a = Asm()
    uid = [0]
    def L(n):
        uid[0] += 1
        return f"L_{n}_{uid[0]}"
    a.sn = 3
    sJ = a.s("J")
    sPX = a.s("PX", 2); sPWS = a.s("PWS", 2)
    sPW = a.s("PW", 8)
    sPO = a.s("PO", 4)
    rWS = a.s("rWS", 4); rX = a.s("rX", 4); rOUT = a.s("rOUT", 4); rDBG = a.s("rDBG", 4); rAUX = a.s("rAUX", 4)
    sA = a.s("A"); sB = a.s("B"); sGam = a.s("Gam"); sSW = a.s("SW")
    sP = a.s("P", 2); sQ = a.s("Q", 2); sQ2 = a.s("Q2", 2); sE = a.s("E", 2); sM = a.s("M", 2)
    sT = [a.s(f"T{i}") for i in range(8)]
    sSpin = a.s("Spin"); sKey = a.s("Key"); sRow = a.s("Row"); sSig = a.s("Sig")
    sI512 = a.s("I512"); s32 = a.s("c32"); sOff = a.s("Off"); sOff2 = a.s("Off2")
    sL0 = a.s("L0", 2)
    sLay = a.s("Lay")
    if prof:
        ts0 = a.s("TS", 16, align=2)
        TSP = [ts0[2*i:2*i+2] for i in range(8)] + [sPW[2*i:2*i+2] for i in range(4)] + [sPO[0:2], sPO[2:4], sPX, sPWS]
    nts = [0]
    def stamp():
        if prof:
            a(f"s_memrealtime {TSP[nts[0]]}")
            nts[0] += 1
    def dump_stamps(n):
        if not prof: return
        a("s_waitcnt lgkmcnt(0)")
        lab = L("nost")
        a(f"s_cmp_lg_u32 {sJ}, 0"); a(f"s_cbranch_scc1 {lab}")
        a(f"s_lshl_b32 {sT[0]}, s2, 6"); a(f"s_add_u32 {sT[0]}, {sT[0]}, {WS_PROF}")
        a(f"s_mov_b64 exec, 1")
        a(f"v_mov_b32 v1, 0")
        for i in range(n):
            a(f"v_mov_b32 v2, {TSP[i][0]}")
            a(f"buffer_store_dword v2, v1, {rWS}, {sT[0]} offen offset:{4*i}")
        a.label(lab)

    def srd(r, p, size):
        a(f"s_mov_b32 {r[0]}, {p[0]}"); a(f"s_mov_b32 {r[1]}, {p[1]}")
        a(f"s_mov_b32 {r[2]}, {size}"); a(f"s_mov_b32 {r[3]}, 0x20000")

    a.vn = 1
    vLane = a.v("lane"); vM = a.v("m"); vG = a.v("g"); vFM = a.v("fm"); vFG = a.v("fg")
    vT16 = a.v("tid16"); vL16 = a.v("lane16")
    t = a.v("t", 24, align=4)
    vbase = a.vn

    def poll(loads, chk, sleep=0):
        lp, dn = L("poll"), L("polld")
        a(f"s_mov_b64 {sE}, exec")
        a(f"s_mov_b32 {sSpin}, {SPIN}")
        if sleep: a(f"s_sleep {sleep}")
        a.label(lp)
        for l in loads: a(l)
        a("s_waitcnt vmcnt(0)")
        c = list(chk); acc = c.pop(0)
        while c:
            if len(c) >= 2:
                a(f"v_max3_u32 {t[23]}, {acc}, {c[0]}, {c[1]}"); c = c[2:]
            else:
                a(f"v_max_u32 {t[23]}, {acc}, {c[0]}"); c = c[1:]
            acc = t[23]
        a(f"v_cmp_eq_u32 vcc, -1, {acc}")
        a(f"s_sub_u32 {sSpin}, {sSpin}, 1")
        a(f"s_cbranch_scc1 {dn}")
        a(f"s_and_b64 exec, exec, vcc")
        a(f"s_cbranch_execnz {lp}")
        a.label(dn)
        a(f"s_mov_b64 exec, {sE}")

    def wait_flag():
        lp, dn = L("flag"), L("flagd")
        a(f"s_mov_b32 {sSpin}, {SPIN}")
        a(f"v_mov_b32 {t[22]}, 0")
        a.label(lp)
        a(f"buffer_load_dword {t[23]}, {t[22]}, {rDBG}, 0 offen sc1")
        a("s_waitcnt vmcnt(0)")
        a(f"v_cmp_gt_u32 vcc, {NH}, {t[23]}")
        a(f"s_sub_u32 {sSpin}, {sSpin}, 1")
        a(f"s_cbranch_scc1 {dn}")
        a(f"s_cbranch_vccnz {lp}")
        a.label(dn)

    def keypoll(koff, zoff, sleep=0):
        a(f"v_lshlrev_b32 {t[0]}, 7, {vLane}")
        a(f"v_add_u32 {t[1]}, {64*KSTR}, {t[0]}")
        a(f"v_mov_b32 {t[2]}, {128*KSTR}")
        poll([f"buffer_load_dword {t[4]}, {t[0]}, {rWS}, {koff} offen sc1",
              f"buffer_load_dword {t[5]}, {t[1]}, {rWS}, {koff} offen sc1",
              f"buffer_load_dword {t[6]}, {t[2]}, {rWS}, {koff} offen sc1"], [t[4], t[5], t[6]], sleep)
        k = t[23]
        for c in ("row_ror:8", "row_ror:4", "row_ror:2", "row_ror:1"):
            a(f"v_max_u32_dpp {k}, {k}, {k} {c} row_mask:0xf bank_mask:0xf")
        a(f"v_max_u32_dpp {k}, {k}, {k} row_bcast:15 row_mask:0xa bank_mask:0xf")
        a(f"v_max_u32_dpp {k}, {k}, {k} row_bcast:31 row_mask:0xc bank_mask:0xf")
        a(f"v_readlane_b32 {sKey}, {k}, 63")
        if zoff is not None:
            key2sig()
            a(f"s_mul_i32 {sT[0]}, {sSig}, {ZSTR}")
            a(f"s_add_u32 {sT[0]}, {sT[0]}, {zoff}")
            a(f"v_mov_b32 {t[2]}, 1024")
            poll([f"buffer_load_dwordx4 {t[4:8]}, {vL16}, {rWS}, {sT[0]} offen sc1",
                  f"buffer_load_dwordx4 {t[8:12]}, {t[2]}, {rWS}, {sT[0]} offen sc1"], [t[i] for i in range(4, 12)])
            a(f"v_add_u32 {t[0]}, {L_Z}, {vL16}")
            a(f"ds_write_b128 {t[0]}, {t[4:8]}")
        a(f"v_mov_b32 {t[11]}, {sKey}")
        a(f"v_mov_b32 {t[0]}, {L_Z}")
        a(f"s_mov_b64 exec, 1")
        a(f"ds_write_b128 {t[0]}, {t[8:12]} offset:1024")
        a(f"s_mov_b64 exec, -1")

    def key2sig():
        a(f"s_and_b32 {sRow}, {sKey}, 2047")
        a(f"s_sub_u32 {sRow}, 2047, {sRow}")
        a(f"s_and_b32 {sSig}, {sRow}, 255")
        a(f"s_sub_u32 {sT[1]}, 256, {sSig}")
        a(f"s_min_u32 {sSig}, {sSig}, {sT[1]}")

    a(f"s_cmp_ge_u32 s2, {NWG}")
    a("s_cbranch_scc1 L_end")
    stamp()
    a(f"s_load_dwordx2 {sPX}, s[0:1], 0")
    a(f"s_load_dwordx2 {sPWS}, s[0:1], 96")
    a(f"s_load_dwordx8 {sPW}, s[0:1], 48")
    a(f"s_load_dwordx4 {sPO}, s[0:1], 80")
    a(f"v_lshrrev_b32 {t[0]}, 6, v0")
    a(f"v_and_b32 {vLane}, 63, v0")
    a(f"v_readfirstlane_b32 {sJ}, {t[0]}")
    a(f"v_lshlrev_b32 {vT16}, 4, v0")
    a(f"v_lshlrev_b32 {vL16}, 4, {vLane}")
    a(f"v_and_b32 {vM}, 15, v0")
    a(f"v_lshrrev_b32 {vG}, 4, {vLane}")
    a(f"s_lshl_b32 {sA}, {sJ}, 8")
    a(f"s_add_u32 {sA}, {sA}, s2")
    a(f"s_sub_u32 {sB}, 2048, {sA}")
    a(f"s_and_b32 {sB}, {sB}, 2047")
    a(f"s_lshl_b32 {sT[0]}, {sA}, 10")
    a(f"s_lshl_b32 {sT[1]}, {sB}, 10")
    a("s_waitcnt lgkmcnt(0)")
    srd(rX, sPX, 2097152)
    srd(rWS, sPWS, WS_SIZE)
    srd(rDBG, sPO[2:4], 256)
    srd(rOUT, sPO[0:2], 2097152)
    srd(rAUX, sPW[0:2], 1024)
    a(f"s_cmp_ge_u32 s2, {NR}")
    a("s_cbranch_scc1 L_notR")

    X = a.v("X", 16); WR = a.v("WR", 16)
    DA2 = a.v("DA2", 16)
    RB = DA2[0:8]
    RA2 = DA2[8:12]; RA2X = DA2[12:16]
    RT = a.v("RT", 8)
    DT = RT
    CB = a.v("CB", 24)
    CT = a.v("CT", 8); CA2 = a.v("CA2", 16)
    DB = a.v("DB", 4)
    aXa = a.v("aXa"); aXb = a.v("aXb"); aXb0 = a.v("aXb0"); aXn = a.v("aXn")
    aRw = a.v("aRw"); aRr = a.v("aRr"); aRr2 = a.v("aRr2"); aYm0 = a.v("aYm0"); aYm1 = a.v("aYm1")
    gA = a.v("gA"); gY = a.v("gY"); aCIw = a.v("aCIw"); aC0 = a.v("aC0"); aC1 = a.v("aC1"); aCx0 = a.v("aCx0"); aCx1 = a.v("aCx1")
    aCOw = a.v("aCOw"); aCOr = a.v("aCOr"); vRowc = a.v("rowc"); vMask0 = a.v("mask0"); vRot0 = a.v("rot0")
    vKey = a.v("rec", 4)
    W = a.v("W", 80, align=4)
    U = W[64:80]
    vmaxR = a.vn

    a(f"buffer_load_dwordx4 {W[0:4]}, {vL16}, {rX}, {sT[0]} offen")
    a(f"buffer_load_dwordx4 {W[4:8]}, {vL16}, {rX}, {sT[1]} offen")
    a(f"buffer_load_dwordx4 {W[8:12]}, {vL16}, {rAUX}, 0 offen")
    for i in range(4): a(f"v_mov_b32 {t[4+i]}, -1")
    a(f"s_lshl_b32 {sT[2]}, s2, 13")
    a(f"s_add_u32 {sT[3]}, {sT[2]}, {WS_Y1}")
    a(f"s_add_u32 {sT[4]}, {sT[2]}, {WS_Y2}")
    a(f"s_mul_i32 {sT[5]}, s2, {AIN}")
    a(f"s_add_u32 {sT[5]}, {sT[5]}, {WS_A2}")
    a(f"v_and_b32 {t[0]}, 0x70, {vT16}")
    a(f"v_add_u32 {t[0]}, 8192, {t[0]}")
    a(f"buffer_store_dwordx4 {t[4:8]}, {vT16}, {rWS}, {sT[3]} offen sc1")
    a(f"buffer_store_dwordx4 {t[4:8]}, {vT16}, {rWS}, {sT[5]} offen sc1")
    a(f"buffer_store_dwordx4 {t[4:8]}, {vT16}, {rWS}, {sT[4]} offen sc1")
    a(f"s_mov_b64 exec, 0xff")
    a(f"buffer_store_dwordx4 {t[4:8]}, {t[0]}, {rWS}, {sT[5]} offen sc1")
    a(f"s_mov_b64 exec, -1")
    a(f"s_mov_b32 {sI512}, {f32(1/512)}")
    a(f"s_mov_b32 {s32}, {f32(32.0)}")
    a(f"s_and_b32 {sT[2]}, s2, 127")
    a(f"s_cmp_eq_u32 {sT[2]}, 0")
    a(f"s_cselect_b32 {sGam}, 0.5, 1.0")
    a(f"s_mov_b64 {sL0}, 1")
    a(f"v_cvt_f32_u32 {vFM}, {vM}")
    a(f"v_cvt_f32_u32 {vFG}, {vG}")

    def cs(dc, ds, ang, negs=False):
        a(f"v_cos_f32 {dc}, {ang}")
        a(f"v_sin_f32 {ds}, {'-' if negs else ''}{ang}" if not negs else f"v_sin_f32_e64 {ds}, -{ang}")
    def pk(d, lo, hi): a(f"v_cvt_pk_f16_f32 {d}, {lo}, {hi}")
    def fmamk(d, x, k, y):
        if k == 0: a(f"v_mov_b32 {d}, {y}")
        else: a(f"v_fmamk_f32 {d}, {x}, {f32(k)}, {y}")

    def quad_cs(dst, x, k, base, scale=None):
        for r in range(4):
            fmamk(t[r], x, k * r, base)
        for r in range(4):
            cs(t[4 + r], t[8 + r], t[r])
        if scale:
            for r in range(8): a(f"v_mul_f32 {t[4+r]}, {f32(scale)}, {t[4+r]}")
        pk(dst[0], t[4], t[5]); pk(dst[1], t[6], t[7]); pk(dst[2], t[8], t[9]); pk(dst[3], t[10], t[11])

    a(f"v_mul_f32 {t[20]}, {vFM}, {vFG}")
    a(f"v_mul_f32 {t[21]}, {f32(1/16)}, {t[20]}")
    for q in range(4):
        b0, b2 = q & 1, q >> 1
        for b1 in range(2):
            fmamk(t[b1], vFM, (b0 + 8 * b1 + 16 * b2) / 32, t[21])
        for b1 in range(2):
            cs(t[2 + b1], t[4 + b1], t[b1], negs=True)
        pk(RB[q], t[2], t[3]); pk(RB[4 + q], t[4], t[5])
    a(f"v_mul_f32 {t[21]}, {f32(4/512)}, {t[20]}")
    quad_cs(RT[0:4], vFM, 1 / 512, t[21])
    a(f"v_add_f32 {t[19]}, {f32(16.0)}, {vFM}")
    a(f"v_mul_f32 {t[21]}, {t[19]}, {vFG}")
    a(f"v_mul_f32 {t[21]}, {f32(4/512)}, {t[21]}")
    quad_cs(RT[4:8], t[19], 1 / 512, t[21])
    a(f"v_lshrrev_b32 {t[16]}, 2, {vM}")
    a(f"v_and_b32 {t[17]}, 2, {vM}")
    a(f"v_lshl_add_u32 {t[16]}, {t[17]}, 1, {t[16]}")
    a(f"v_cvt_f32_u32 {t[19]}, {t[16]}")
    a(f"v_and_b32 {t[17]}, 1, {vM}")
    a(f"v_cvt_f32_u32 {t[17]}, {t[17]}")
    a(f"v_fma_f32 {t[21]}, {t[19]}, {vFG}, {t[17]}")
    a(f"v_mul_f32 {t[21]}, 0.25, {t[21]}".replace("0.25", f32(0.25)))
    quad_cs(RA2, t[19], 1 / 16, t[21])
    a(f"v_mov_b32 {RA2X[0]}, 0xbc003c00"); a(f"v_mov_b32 {RA2X[1]}, 0xbc003c00")
    a(f"v_mov_b32 {RA2X[2]}, 0"); a(f"v_mov_b32 {RA2X[3]}, 0")
    a(f"s_mul_i32 {sT[2]}, {sJ}, 3072")
    a(f"v_add_u32 {aXn}, {sT[2]}, {vL16}")
    a(f"v_lshlrev_b32 {t[0]}, 6, {vG}")
    a(f"v_lshl_add_u32 {t[0]}, {vM}, 1, {t[0]}")
    a(f"v_add_u32 {aXa}, {sT[2]}, {t[0]}")
    a(f"v_sub_u32 {t[1]}, 1024, {t[0]}")
    a(f"v_and_b32 {t[2]}, 1023, {t[1]}")
    a(f"v_add_u32 {aXb0}, {sT[2]}, {t[2]}")
    a(f"s_sub_u32 {sT[3]}, {sT[2]}, 800")
    a(f"v_add_u32 {aXb}, {sT[3]}, {t[1]}")
    a(f"s_mul_i32 {sT[2]}, {sJ}, 520")
    a(f"v_lshl_add_u32 {aRw}, {t[0]}, 1, {sT[2]}")
    a(f"v_and_b32 {t[3]}, 3, v0")
    a(f"v_mul_u32_u24 {t[4]}, 2080, {t[3]}")
    a(f"v_and_b32 {t[5]}, 0x1fc, v0")
    a(f"v_add_u32 {aRr}, {t[4]}, {t[5]}")
    a(f"v_add_u32 {aRr2}, 1040, {aRr}")
    a(f"s_sub_u32 {sT[2]}, 7, {sJ}")
    a(f"s_sub_u32 {sT[3]}, 8, {sJ}")
    a(f"s_and_b32 {sT[3]}, {sT[3]}, 7")
    a(f"s_cmp_eq_u32 s2, 0")
    a(f"s_cselect_b32 {sT[2]}, {sT[3]}, {sT[2]}")
    a(f"s_mul_i32 {sT[2]}, {sT[2]}, 520")
    a(f"s_add_u32 {sT[2]}, {sT[2]}, {L_RY + 8*520}")
    a(f"v_lshlrev_b32 {t[4]}, 1, {t[0]}")
    a(f"v_sub_u32 {t[5]}, 512, {t[4]}")
    a(f"v_and_b32 {t[6]}, 511, {t[5]}")
    a(f"v_add_u32 {aYm0}, {sT[2]}, {t[6]}")
    a(f"s_sub_u32 {sT[2]}, {sT[2]}, 64")
    a(f"v_add_u32 {aYm1}, {sT[2]}, {t[5]}")
    a(f"v_lshrrev_b32 {t[4]}, 2, v0")
    a(f"v_mul_u32_u24 {gA}, {AIN}, {t[4]}")
    a(f"v_lshlrev_b32 {t[5]}, 4, {t[3]}")
    a(f"s_lshl_b32 {sT[2]}, s2, 6")
    a(f"v_add3_u32 {gA}, {gA}, {t[5]}, {sT[2]}")
    a(f"v_lshlrev_b32 {gY}, 13, {t[4]}")
    a(f"v_add3_u32 {gY}, {gY}, {t[5]}, {sT[2]}")
    a(f"s_sub_u32 {sT[2]}, 2047, {sA}")
    a(f"s_sub_u32 {sT[3]}, 2047, {sB}")
    a(f"v_mov_b32 {vRowc}, {sT[2]}")
    a(f"v_mov_b32 {t[6]}, {sT[3]}")
    a(f"v_cmp_lt_u32 vcc, 31, {vLane}")
    a(f"v_cndmask_b32 {vRowc}, {vRowc}, {t[6]}, vcc")
    a(f"v_mov_b32 {t[6]}, 0xffff0000")
    a(f"v_cndmask_b32_e64 {vMask0}, -1, {t[6]}, {sL0}")
    a(f"v_cndmask_b32_e64 {vRot0}, 0, 16, {sL0}")

    def soff(i):
        b1, b0, b2 = i & 1, (i >> 1) & 1, i >> 2
        return 32 * b0 + 256 * b1 + 512 * b2
    def read_rows(dst, offa, offb):
        for i in range(8):
            a(f"ds_read_u16_d16_hi {dst[2*i]}, {aXa} offset:{offa + soff(i)}")
            if i == 0: a(f"ds_read_u16_d16_hi {dst[1]}, {aXb0} offset:{offb}")
            else: a(f"ds_read_u16_d16_hi {dst[2*i+1]}, {aXb} offset:{offb + 800 - soff(i)}")

    a("s_waitcnt vmcnt(4)")
    stamp()
    a(f"ds_write_b128 {aXn}, {W[0:4]}")
    a(f"ds_write_b128 {aXn}, {W[4:8]} offset:1024")
    a(f"ds_write_b128 {aXn}, {W[8:12]} offset:2048")
    a("s_waitcnt lgkmcnt(0)")
    read_rows(X, 0, 1024)
    a("s_waitcnt lgkmcnt(0)")

    def reduce5(regs):
        for c in ("row_ror:8", "row_ror:4", "row_ror:2", "row_ror:1"):
            for r in regs: a(f"v_add_f32_dpp {r}, {r}, {r} {c} row_mask:0xf bank_mask:0xf")
        for r in regs: a(f"v_add_f32_dpp {r}, {r}, {r} row_bcast:15 row_mask:0xa bank_mask:0xf")

    def stats(dot):
        a(f"v_readfirstlane_b32 {sP[0]}, {X[0]}")
        a(f"v_readfirstlane_b32 {sP[1]}, {X[1]}")
        S1, S2, S3 = t[0:2], t[2:4], t[4:6]
        for i in range(8):
            a(f"v_pk_add_f32 {U[2*i:2*i+2]}, {X[2*i:2*i+2]}, {sP} neg_lo:[0,1] neg_hi:[0,1]")
        a(f"v_pk_mul_f32 {S2}, {U[0:2]}, {U[0:2]}")
        if dot: a(f"v_pk_mul_f32 {S3}, {U[0:2]}, {WR[0:2]}")
        for i in range(1, 8):
            u = U[2*i:2*i+2]
            a(f"v_pk_add_f32 {S1}, {U[0:2] if i == 1 else S1}, {u}")
            a(f"v_pk_fma_f32 {S2}, {u}, {u}, {S2}")
            if dot: a(f"v_pk_fma_f32 {S3}, {u}, {WR[2*i:2*i+2]}, {S3}")
        SS = [S1, S2] + ([S3] if dot else [])
        for S in SS: a(f"v_permlane32_swap_b32 {S[0]}, {S[1]}")
        for S in SS: a(f"v_add_f32 {S[0]}, {S[0]}, {S[1]}")
        reduce5([S[0] for S in SS])
        a(f"v_mul_f32 {t[0]}, {sI512}, {t[0]}")
        a(f"v_mul_f32 {t[1]}, {t[0]}, {t[0]}")
        a(f"v_fma_f32 {t[2]}, {t[2]}, {sI512}, -{t[1]}")
        a(f"v_max_f32 {t[2]}, 0, {t[2]}")
        a(f"v_add_f32 {t[3]}, {f32(EPS)}, {t[2]}")
        a(f"v_rsq_f32 {t[1]}, {t[3]}")

    def twiddle(dst, re, im, tw):
        x = t[12:16]
        pk(x[0], re[0], re[1]); pk(x[1], re[2], re[3]); pk(x[2], im[0], im[1]); pk(x[3], im[2], im[3])
        for h in range(2):
            a(f"v_pk_mul_f16 {dst[h]}, {x[h]}, {tw[h]}")
            a(f"v_pk_mul_f16 {dst[2+h]}, {x[2+h]}, {tw[h]}")
        for h in range(2):
            a(f"v_pk_fma_f16 {dst[h]}, {x[2+h]}, {tw[2+h]}, {dst[h]}")
            a(f"v_pk_fma_f16 {dst[2+h]}, {x[h]}, {tw[2+h]}, {dst[2+h]} neg_lo:[1,0,0] neg_hi:[1,0,0]")

    def mf(d, A, B, C): a(f"v_mfma_f32_16x16x32_f16 {d}, {A}, {B}, {C}")

    def sendA(coef, base, first):
        a(f"v_mul_f32 {coef}, {sGam}, {coef}")
        a(f"v_mul_f32 {t[6]}, {coef}, {t[0]}")
        a(f"v_readlane_b32 {sQ[0]}, {coef}, 16")
        a(f"v_readlane_b32 {sQ[1]}, {coef}, 48")
        a(f"v_readlane_b32 {sQ2[0]}, {t[6]}, 16")
        a(f"v_readlane_b32 {sQ2[1]}, {t[6]}, 48")
        a(f"v_mov_b32 {t[6]}, {sQ2[0]}")
        a(f"v_add_f32 {t[6]}, {sQ2[1]}, {t[6]}")
        w = W[0:8]
        for i in range(8): a(f"v_fma_f32 {w[i]}, {U[2*i+1]}, {sQ[1]}, -{t[6]}")
        for i in range(8): a(f"v_fmac_f32 {w[i]}, {sQ[0]}, {U[2*i]}")
        A0, A1 = W[8:12], W[12:16]
        for q in range(4): pk(A0[q], w[2*q], w[2*q+1])
        D = [W[16:20], W[20:24], W[24:28], W[28:32]]
        a(f"v_mov_b32 {A1[0]}, {A0[0]}")
        a(f"v_xor_b32 {A1[1]}, 0x80008000, {A0[1]}")
        mf(D[0], A0, RB[0:4], 0)
        a(f"v_mov_b32 {A1[2]}, {A0[2]}")
        a(f"v_xor_b32 {A1[3]}, 0x80008000, {A0[3]}")
        mf(D[1], A0, RB[4:8], 0)
        mf(D[2], A1, RB[0:4], 0)
        mf(D[3], A1, RB[4:8], 0)
        B0, B1 = W[0:4], W[4:8]
        twiddle(B0, D[0], D[1], RT[0:4])
        E0, E1, EX = W[32:36], W[36:40], W[40:44]
        mf(E0, RA2, B0, 0)
        mf(EX, RA2X, B0, 0)
        twiddle(B1, D[2], D[3], RT[4:8])
        mf(E1, RA2, B1, 0)
        a(f"v_cndmask_b32_e64 {E0[0]}, {E0[0]}, {EX[0]}, {sL0}")
        pk(t[0], E0[0], E0[1]); pk(t[1], E0[2], E0[3])
        a(f"ds_write_b32 {aRw}, {t[0]} offset:{L_RA}")
        a(f"ds_write_b32 {aRw}, {t[1]} offset:{L_RA + 8*520}")
        pk(t[2], E1[0], E1[1]); pk(t[3], E1[2], E1[3])
        a(f"ds_write_b32 {aRw}, {t[2]} offset:{L_RA + 64}")
        a(f"ds_write_b32 {aRw}, {t[3]} offset:{L_RA + 8*520 + 64}")
        if first:
            lab = L("nf")
            a(f"s_cmp_lg_u32 {sJ}, 7"); a(f"s_cbranch_scc1 {lab}")
            wait_flag()
            a.label(lab)
            a("s_waitcnt vmcnt(0)")
        a(f"s_mov_b32 {sOff}, {base}")
        a("s_waitcnt lgkmcnt(0)")
        a("s_barrier")
        for x in range(4):
            a(f"ds_read_b32 {t[4+x]}, {aRr} offset:{L_RA + 520*x}")
        a("s_waitcnt lgkmcnt(0)")
        a(f"buffer_store_dwordx4 {t[4:8]}, {gA}, {rWS}, {sOff} offen sc1")

    stats(False)
    sendA(t[1], WS_A1, True)
    stamp()

    read_rows(WR, 2048, 2048)
    a(f"v_and_b32 {t[3]}, 3, v0")
    a(f"v_lshrrev_b32 {t[4]}, 2, v0")
    a(f"v_lshlrev_b32 {t[5]}, 1, {t[3]}")
    a(f"v_xor_b32 {t[5]}, {t[4]}, {t[5]}")
    a(f"v_mul_u32_u24 {aCIw}, {PL}, {t[3]}")
    a(f"v_lshl_add_u32 {aCIw}, {t[5]}, 4, {aCIw}")
    a(f"v_and_b32 {t[6]}, 1, {vG}")
    a(f"v_lshrrev_b32 {t[7]}, 1, {vG}")
    a(f"v_lshlrev_b32 {t[8]}, 1, {t[6]}")
    a(f"v_xor_b32 {t[9]}, {vM}, {t[8]}")
    a(f"v_lshl_add_u32 {t[9]}, {t[7]}, 5, {t[9]}")
    a(f"v_mul_u32_u24 {t[10]}, {PL}, {t[6]}")
    a(f"v_lshl_add_u32 {aC0}, {t[9]}, 4, {t[10]}")
    a(f"v_xor_b32 {aC1}, 64, {aC0}")
    a(f"v_add_u32 {aC1}, {2*PL}, {aC1}")
    a(f"v_and_b32 {t[11]}, 47, {vLane}")
    a(f"v_cmp_eq_u32 vcc, 0, {t[11]}")
    a(f"v_add_u32 {t[11]}, 2048, {aC0}")
    a(f"v_add_u32 {t[12]}, 2048, {aC1}")
    a(f"v_mov_b32 {t[13]}, {140*16}")
    a(f"v_cndmask_b32 {aCx0}, {t[13]}, {t[11]}, vcc")
    a(f"v_cndmask_b32 {aCx1}, {t[13]}, {t[12]}, vcc")
    for i in range(4): a(f"v_mov_b32 {t[16+i]}, 0")
    a(f"ds_write_b128 {t[13]}, {t[16:20]} offset:{L_CI}")
    a(f"v_mov_b32 {t[13]}, {L_KMAX}")
    a(f"ds_write_b64 {t[13]}, {t[16:18]}")
    a(f"s_lshl_b32 {sT[2]}, {sJ}, 8")
    a(f"v_lshlrev_b32 {aCOw}, 10, {vG}")
    a(f"v_lshl_add_u32 {aCOw}, {vM}, 4, {aCOw}")
    a(f"v_add_u32 {aCOw}, {sT[2]}, {aCOw}")
    a(f"v_sub_u32 {t[5]}, 256, {t[4]}")
    a(f"v_and_b32 {t[5]}, 255, {t[5]}")
    a(f"v_cmp_lt_u32 vcc, 1, {t[3]}")
    a(f"v_and_b32 {t[6]}, 1, {t[3]}")
    a(f"v_cndmask_b32 {t[5]}, {t[4]}, {t[5]}, vcc")
    a(f"v_mul_u32_u24 {aCOr}, {PL2}, {t[6]}")
    a(f"v_lshl_add_u32 {aCOr}, {t[5]}, 4, {aCOr}")
    a("s_waitcnt lgkmcnt(0)")
    a(f"v_add_f32 {t[0]}, {WR[0]}, {WR[2]}")
    for i in range(2, 8): a(f"v_add_f32 {t[0]}, {t[0]}, {WR[2*i]}")
    reduce5([t[0]])
    a(f"v_add_f32_dpp {t[0]}, {t[0]}, {t[0]} row_bcast:31 row_mask:0xc bank_mask:0xf")
    a(f"v_readlane_b32 {sSW}, {t[0]}, 63")
    lab = L("noc")
    a(f"s_cmp_ge_u32 {sJ}, 4"); a(f"s_cbranch_scc1 {lab}")
    a(f"s_lshl_b32 {sT[2]}, {sJ}, 4")
    a(f"v_add_u32 {t[19]}, {sT[2]}, {vM}")
    a(f"v_cvt_f32_u32 {t[19]}, {t[19]}")
    a(f"v_and_b32 {t[16]}, 1, {vG}")
    a(f"v_lshrrev_b32 {t[17]}, 1, {vG}")
    a(f"v_lshl_add_u32 {t[16]}, {t[16]}, 5, {t[17]}")
    a(f"v_cvt_f32_u32 {t[16]}, {t[16]}")
    a(f"v_mul_f32 {t[21]}, {t[16]}, {t[19]}")
    a(f"v_mul_f32 {t[21]}, {f32(1/64)}, {t[21]}")
    for k in range(3):
        for x in range(4): fmamk(t[x], t[19], (2 * k + 8 * x) / 64, t[21])
        for x in range(4): cs(t[4 + x], t[8 + x], t[x])
        for x in range(4):
            pk(CB[8*k + x], t[4 + x], t[8 + x])
            pk(CB[8*k + 4 + x], f"-{t[8+x]}", t[4 + x])
    a(f"v_mul_f32 {t[21]}, {t[19]}, {vFG}")
    a(f"v_mul_f32 {t[21]}, {f32(4/2048)}, {t[21]}")
    quad_cs(CT[0:4], t[19], 1 / 2048, t[21])
    fmamk(t[21], t[19], 16 / 2048, t[21])
    quad_cs(CT[4:8], t[19], 1 / 2048, t[21])
    def a2_family(dst, k2, scale):
        a(f"v_cvt_f32_u32 {t[19]}, {k2}")
        a(f"v_and_b32 {t[18]}, 1, {k2}")
        a(f"v_mul_u32_u24 {t[18]}, 0x8000, {t[18]}")
        a(f"v_lshl_or_b32 {t[18]}, {t[18]}, 16, {t[18]}")
        a(f"v_mul_f32 {t[21]}, {t[19]}, {vFG}")
        a(f"v_mul_f32 {t[21]}, {f32(4/32)}, {t[21]}")
        quad_cs(dst[0:4], t[19], 1 / 32, t[21], scale)
        for x in range(4): a(f"v_xor_b32 {dst[4+x]}, {t[18]}, {dst[x]}")
        for x in range(8): a(f"v_xor_b32 {dst[8+x]}, 0x80000000, {dst[x]}")
    a(f"v_lshrrev_b32 {t[16]}, 2, {vM}")
    a(f"v_and_b32 {t[17]}, 3, {vM}")
    a(f"v_lshl_add_u32 {t[16]}, {t[17]}, 2, {t[16]}")
    a2_family(CA2, t[16], 1 / 32)
    a.label(lab)

    def cphase(abase, ybase):
        skip = L("cskip")
        a(f"s_cmp_eq_u32 s2, 128"); a(f"s_cbranch_scc1 {skip}")
        a(f"s_mul_i32 {sOff}, s2, {AIN}")
        a(f"s_add_u32 {sOff}, {sOff}, {abase}")
        poll([f"buffer_load_dwordx4 {t[4:8]}, {vT16}, {rWS}, {sOff} offen sc1"], [t[i] for i in range(4, 8)], o["sleepA"])
        a(f"ds_write_b128 {aCIw}, {t[4:8]} offset:{L_CI}")
        lab = L("nox")
        a(f"s_cmp_lg_u32 {sJ}, 0"); a(f"s_cbranch_scc1 {lab}")
        a(f"s_add_u32 {sOff}, {sOff}, 8192")
        a(f"s_mov_b64 exec, 0xf")
        poll([f"buffer_load_dwordx4 {t[8:12]}, {vT16}, {rWS}, {sOff} offen sc1"], [t[i] for i in range(8, 12)])
        a(f"ds_write_b128 {aCIw}, {t[8:12]} offset:{L_CI + 2048}")
        a(f"s_mov_b64 exec, -1")
        a.label(lab)
        a("s_waitcnt lgkmcnt(0)")
        a("s_barrier")
        stamp()
        lab = L("noc2")
        a(f"s_cmp_ge_u32 {sJ}, 4"); a(f"s_cbranch_scc1 {lab}")
        F = [[W[20*u + 4*i: 20*u + 4*i + 4] for i in range(5)] for u in range(2)]
        ac, ax = [aC0, aC1], [aCx0, aCx1]
        for u in range(2):
            for Tm in range(2):
                for k in range(2):
                    a(f"ds_read_b128 {F[u][2*Tm+k]}, {ac[u]} offset:{L_CI + 256*Tm + 1024*k}")
                if Tm == 0: a(f"ds_read_b128 {F[u][4]}, {ax[u]} offset:{L_CI}")
        D = [[W[40 + 16*u + 4*i: 44 + 16*u + 4*i] for i in range(4)] for u in range(2)]
        def s1(u, Tm):
            for k in range(2):
                for p in range(2):
                    mf(D[u][2*Tm+p], F[u][2*Tm+k], CB[8*k + 4*p: 8*k + 4*p + 4], 0 if k == 0 else D[u][2*Tm+p])
            if Tm == 0:
                for p in range(2):
                    mf(D[u][p], F[u][4], CB[16 + 4*p: 20 + 4*p], D[u][p])
        a("s_waitcnt lgkmcnt(7)"); s1(0, 0)
        a("s_waitcnt lgkmcnt(5)"); s1(0, 1)
        a("s_waitcnt lgkmcnt(2)"); s1(1, 0)
        Bf = [[W[0:4], W[4:8]], [W[8:12], W[12:16]]]
        twiddle(Bf[0][0], D[0][0], D[0][1], CT[0:4])
        a("s_waitcnt lgkmcnt(0)"); s1(1, 1)
        twiddle(Bf[0][1], D[0][2], D[0][3], CT[4:8])
        Y = [[W[72:76], W[76:80]], [W[40:44], W[44:48]]]
        def s2f(u):
            for Tm in range(2):
                for Mt in range(2):
                    mf(Y[u][Mt], CA2[8*Mt + 4*Tm: 8*Mt + 4*Tm + 4], Bf[u][Tm], 0 if Tm == 0 else Y[u][Mt])
        s2f(0)
        twiddle(Bf[1][0], D[1][0], D[1][1], CT[0:4])
        twiddle(Bf[1][1], D[1][2], D[1][3], CT[4:8])
        s2f(1)
        for Mt in range(2):
            for r in range(4): pk(t[4*Mt + r], Y[0][Mt][r], Y[1][Mt][r])
            a(f"ds_write_b128 {aCOw}, {t[4*Mt:4*Mt+4]} offset:{L_CO + PL2*Mt}")
        a.label(lab)
        a(f"s_mov_b32 {sOff}, {ybase}")
        a("s_waitcnt lgkmcnt(0)")
        a("s_barrier")
        a(f"ds_read_b128 {t[4:8]}, {aCOr} offset:{L_CO}")
        lab = L("nox2")
        a(f"s_cmp_lg_u32 {sJ}, 0"); a(f"s_cbranch_scc1 {lab}")
        a(f"s_mov_b64 exec, 0xf")
        a(f"ds_read_b128 {t[8:12]}, {aCOr} offset:{L_CO + 2048}")
        a(f"s_add_u32 {sOff2}, {sOff}, {128*8192}")
        a("s_waitcnt lgkmcnt(0)")
        a(f"buffer_store_dwordx4 {t[8:12]}, {gY}, {rWS}, {sOff2} offen sc1")
        a(f"s_mov_b64 exec, -1")
        a.label(lab)
        a("s_waitcnt lgkmcnt(0)")
        a(f"buffer_store_dwordx4 {t[4:8]}, {gY}, {rWS}, {sOff} offen sc1")
        a.label(skip)
        stamp()

    def recvY(ybase):
        a(f"s_lshl_b32 {sOff}, s2, 13")
        a(f"s_add_u32 {sOff}, {sOff}, {ybase}")
        poll([f"buffer_load_dwordx4 {t[4:8]}, {vT16}, {rWS}, {sOff} offen sc1"], [t[i] for i in range(4, 8)], o["sleepY"])
        for x in range(4):
            a(f"ds_write_b32 {aRr}, {t[4+x]} offset:{L_RY + 520*x}")
        a("s_waitcnt lgkmcnt(0)")
        a("s_barrier")
        stamp()
        a(f"ds_read_b32 {t[8]}, {aRw} offset:{L_RY}")
        a(f"ds_read_b32 {t[9]}, {aRw} offset:{L_RY + 64}")
        a(f"ds_read_b32 {t[10]}, {aYm0}")
        a(f"ds_read_b32 {t[11]}, {aYm1}")
        a("s_waitcnt lgkmcnt(0)")
        a(f"v_and_b32 {t[8]}, {vMask0}, {t[8]}")
        a(f"v_alignbit_b32 {t[10]}, {t[10]}, {t[10]}, {vRot0}")
        for q in (1, 0, 3, 2):
            for b1 in range(2):
                hi = b1 if q < 2 else 1 - b1
                for r in range(2):
                    x = X[2*(2*q + b1) + r]
                    a(f"v_fma_mix_f32 {x}, {t[8+q]}, {s32}, {x} op_sel:[{hi},0,0] op_sel_hi:[1,0,0]")

    def nat_write(src, rowb):
        for i in range(8):
            if not rowb: a(f"ds_write_b16 {aXa}, {src[i]} offset:{soff(i)}")
            elif i == 0: a(f"ds_write_b16_d16_hi {aXb0}, {src[0]} offset:1024")
            else: a(f"ds_write_b16_d16_hi {aXb}, {src[i]} offset:{1024 + 800 - soff(i)}")

    def route(layer, kbase, zbase):
        mean, rstd, var, ve = t[0], t[1], t[2], t[3]
        a(f"v_fma_f32 {t[4]}, -{mean}, {sSW}, {t[4]}")
        a(f"v_mul_f32 {vKey[2]}, {t[4]}, {rstd}")
        a(f"v_ashrrev_i32 {t[5]}, 31, {vKey[2]}")
        a(f"v_or_b32 {t[5]}, 0x80000000, {t[5]}")
        a(f"v_xor_b32 {t[5]}, {t[5]}, {vKey[2]}")
        a(f"v_and_b32 {t[5]}, 0xfffff800, {t[5]}")
        a(f"v_or_b32 {vKey[3]}, {t[5]}, {vRowc}")
        a(f"v_mov_b32 {t[5]}, {L_KMAX + 4*layer}")
        a(f"s_mov_b32 exec_lo, 0x10000"); a(f"s_mov_b32 exec_hi, 0x10000")
        a(f"ds_max_u32 {t[5]}, {vKey[3]}")
        a(f"s_mov_b64 exec, -1")
        a(f"v_add_f32 {t[8]}, 1.0, {rstd}")
        a(f"v_mul_f32 {t[9]}, {mean}, {rstd}")
        a(f"v_mul_f32 {t[7]}, {t[8]}, {t[8]}")
        a(f"v_fmaak_f32 {t[7]}, {t[7]}, {var}, {f32(EPS)}")
        a(f"v_rsq_f32 {t[7]}, {t[7]}")
        a(f"v_mul_f32 {t[10]}, {ve}, {rstd}")
        a(f"v_mul_f32 {t[7]}, {t[7]}, {t[8]}")
        a(f"v_add_f32 {vKey[0]}, 1.0, {t[10]}")
        a(f"v_mul_f32 {vKey[1]}, {t[7]}, {t[10]}")
        a("s_waitcnt lgkmcnt(0)")
        a("s_barrier")
        a(f"ds_read_b32 {t[6]}, {t[5]}")
        a(f"v_readlane_b32 {sQ[0]}, {rstd}, 16")
        a(f"v_readlane_b32 {sQ[1]}, {rstd}, 48")
        a(f"v_readlane_b32 {sQ2[0]}, {t[9]}, 16")
        a(f"v_readlane_b32 {sQ2[1]}, {t[9]}, 48")
        a(f"s_lshl_b32 {sOff}, s2, 7")
        a(f"s_add_u32 {sOff}, {sOff}, {kbase}")
        a(f"s_mul_i32 {sOff2}, s2, {ZSTR}")
        a(f"s_add_u32 {sOff2}, {sOff2}, {zbase}")
        a(f"v_mov_b32 {t[10]}, {sQ2[0]}")
        a(f"v_mov_b32 {t[11]}, {sQ2[1]}")
        a(f"v_mov_b32 {t[5]}, 0")
        a("s_waitcnt lgkmcnt(0)")
        a(f"v_cmp_eq_u32 vcc, {t[6]}, {vKey[3]}")
        a(f"s_and_b32 {sM[0]}, vcc_lo, 0x10000")
        a(f"s_and_b32 {sM[1]}, vcc_hi, 0x10000")
        a(f"s_cmp_lg_u32 {sM[0]}, 0")
        a(f"s_cselect_b32 {sM[1]}, 0, {sM[1]}")
        n1 = L("nokey")
        a(f"s_or_b32 {sT[0]}, {sM[0]}, {sM[1]}")
        a(f"s_cbranch_scc0 {n1}")
        a(f"s_mov_b64 exec, {sM}")
        a(f"buffer_store_dword {vKey[3]}, {t[5]}, {rWS}, {sOff} offen sc1")
        a(f"buffer_store_dwordx4 {vKey}, {t[5]}, {rWS}, {sOff2} offen offset:1024 sc1")
        a(f"s_mov_b64 exec, -1")
        a.label(n1)
        Z = W[0:16]
        for i in range(8):
            a(f"v_pk_fma_f32 {Z[2*i:2*i+2]}, {U[2*i:2*i+2]}, {sQ}, {t[10:12]} neg_lo:[0,0,1] neg_hi:[0,0,1]")
        n2, n3, n4 = L("noz"), L("zb"), L("zj")
        a(f"s_cmp_eq_u32 {sT[0]}, 0")
        a(f"s_cbranch_scc1 {n2}")
        P = W[16:24]
        for i in range(8): a(f"v_cvt_pk_bf16_f32 {P[i]}, {Z[2*i]}, {Z[2*i+1]}")
        a(f"s_cmp_eq_u32 {sM[0]}, 0")
        a(f"s_cbranch_scc1 {n3}")
        nat_write(P, False)
        a("s_waitcnt lgkmcnt(0)")
        a(f"ds_read_b128 {W[24:28]}, {aXn}")
        a(f"s_branch {n4}")
        a.label(n3)
        nat_write(P, True)
        a("s_waitcnt lgkmcnt(0)")
        a(f"ds_read_b128 {W[24:28]}, {aXn} offset:1024")
        a.label(n4)
        a("s_waitcnt lgkmcnt(0)")
        a(f"buffer_store_dwordx4 {W[24:28]}, {vL16}, {rWS}, {sOff2} offen sc1")
        a.label(n2)
        for i in range(8):
            a(f"v_pk_add_f32 {X[2*i:2*i+2]}, {X[2*i:2*i+2]}, {Z[2*i:2*i+2]}")

    def preduce(pbase):
        a(f"v_lshrrev_b32 {t[0]}, 3, {vLane}")
        a(f"v_and_b32 {t[1]}, 7, {vLane}")
        a(f"v_lshlrev_b32 {t[2]}, 10, {t[0]}")
        a(f"v_lshl_add_u32 {t[2]}, {t[1]}, 4, {t[2]}")
        a(f"v_add_u32 {t[3]}, 8192, {t[2]}")
        a(f"v_add_u32 {t[20]}, 16384, {t[2]}")
        a(f"v_add_u32 {t[21]}, 24576, {t[2]}")
        a(f"v_cmp_lt_u32 vcc, 31, {vLane}")
        a(f"v_mov_b32 {t[22]}, {WS_SIZE}")
        a(f"v_cndmask_b32 {t[21]}, {t[21]}, {t[22]}, vcc")
        a(f"s_lshl_b32 {sOff}, {sJ}, 7")
        a(f"s_add_u32 {sOff}, {sOff}, {pbase}")
        a(f"v_and_b32 {t[22]}, 3, {t[0]}")
        a(f"v_lshlrev_b32 {t[22]}, 4, {t[22]}")
        a(f"v_lshl_add_u32 {t[22]}, {t[1]}, 1, {t[22]}")
        a(f"v_lshrrev_b32 {t[0]}, 2, {t[0]}")
        a(f"v_add_u32 {t[22]}, {t[22]}, {t[0]}")
        a(f"s_lshl_b32 {sT[0]}, {sJ}, 8")
        a(f"v_lshl_add_u32 {t[22]}, {t[22]}, 2, {sT[0]}")
        a(f"s_mov_b32 {sM[0]}, 0xff00ff00"); a(f"s_mov_b32 {sM[1]}, 0xff00ff00")
        ad = [t[2], t[3], t[20], t[21]]
        poll([f"buffer_load_dwordx4 {t[4+4*i:8+4*i]}, {ad[i]}, {rWS}, {sOff} offen sc1" for i in range(4)],
             [t[i] for i in range(4, 20)], o["sleepP"])
        stamp()
        acc = W[64:72]; tmp = W[72:80]
        for xx in range(4):
            a(f"v_lshlrev_b32 {acc[2*xx]}, 16, {t[4+xx]}")
            a(f"v_and_b32 {acc[2*xx+1]}, 0xffff0000, {t[4+xx]}")
        for i in range(1, 4):
            for xx in range(4):
                a(f"v_lshlrev_b32 {tmp[2*xx]}, 16, {t[4+4*i+xx]}")
                a(f"v_and_b32 {tmp[2*xx+1]}, 0xffff0000, {t[4+4*i+xx]}")
            for xx in range(4):
                a(f"v_pk_add_f32 {acc[2*xx:2*xx+2]}, {acc[2*xx:2*xx+2]}, {tmp[2*xx:2*xx+2]}")
        for x in range(4): a(f"v_permlane32_swap_b32 {acc[x]}, {acc[x+4]}")
        a(f"v_pk_add_f32 {acc[0:2]}, {acc[0:2]}, {acc[4:6]}")
        a(f"v_pk_add_f32 {acc[2:4]}, {acc[2:4]}, {acc[6:8]}")
        for x in range(2): a(f"v_permlane16_swap_b32 {acc[x]}, {acc[x+2]}")
        a(f"v_pk_add_f32 {acc[0:2]}, {acc[0:2]}, {acc[2:4]}")
        for x in range(2): a(f"v_add_f32_dpp {acc[x]}, {acc[x]}, {acc[x]} row_ror:8 row_mask:0xf bank_mask:0xf")
        a(f"v_cndmask_b32_e64 {acc[0]}, {acc[0]}, {acc[1]}, {sM}")
        a(f"ds_write_b32 {t[22]}, {acc[0]} offset:{L_YV}")
        a("s_waitcnt lgkmcnt(0)")
        a("s_barrier")

    def read_y(dst):
        a(f"v_lshlrev_b32 {t[0]}, 7, {vG}")
        a(f"v_lshl_add_u32 {t[0]}, {vM}, 2, {t[0]}")
        for i in range(8): a(f"ds_read_b32 {dst[i]}, {t[0]} offset:{L_YV + 2*soff(i)}")

    def add_y_owner(Yr, have_y):
        n1, n2 = L("nya"), L("nyb")
        a(f"s_cmp_lg_u32 {sA}, {sRow}"); a(f"s_cbranch_scc1 {n1}")
        if not have_y:
            read_y(Yr); a("s_waitcnt lgkmcnt(0)")
        for i in range(8): a(f"v_add_f32 {X[2*i]}, {X[2*i]}, {Yr[i]}")
        a.label(n1)
        a(f"s_cmp_lg_u32 {sB}, {sRow}"); a(f"s_cbranch_scc1 {n2}")
        a(f"v_lshlrev_b32 {t[0]}, 7, {vG}")
        a(f"v_lshl_add_u32 {t[0]}, {vM}, 2, {t[0]}")
        a(f"v_sub_u32 {t[0]}, 2048, {t[0]}")
        a(f"v_and_b32 {t[1]}, 2047, {t[0]}")
        a(f"ds_read_b32 {t[4]}, {t[1]} offset:{L_YV}")
        for i in range(1, 8): a(f"ds_read_b32 {t[4+i]}, {t[0]} offset:{L_YV - 2*soff(i)}")
        a("s_waitcnt lgkmcnt(0)")
        for i in range(8): a(f"v_add_f32 {X[2*i+1]}, {X[2*i+1]}, {t[4+i]}")
        a.label(n2)

    cphase(WS_A1, WS_Y1)
    recvY(WS_Y1)
    stats(True)
    route(0, WS_K1, WS_Z1)
    stamp()
    sendA(t[7], WS_A2, False)
    stamp()
    a(f"v_mul_f32 {t[21]}, {vFM}, {vFG}")
    a(f"v_mul_f32 {t[21]}, {f32(1/16)}, {t[21]}")
    for x in range(4): fmamk(t[x], vFM, (4 * (x & 1) + 8 * (x >> 1)) / 16, t[21])
    for x in range(4): cs(t[4 + x], t[8 + x], t[x], negs=True)
    pk(DB[0], t[4], t[5]); pk(DB[1], t[6], t[7]); pk(DB[2], t[8], t[9]); pk(DB[3], t[10], t[11])
    a(f"v_lshrrev_b32 {t[16]}, 1, {vM}")
    a(f"v_and_b32 {t[17]}, 1, {vM}")
    a(f"v_lshl_add_u32 {t[16]}, {t[17]}, 3, {t[16]}")
    a2_family(DA2, t[16], None)

    cphase(WS_A2, WS_Y2)
    lab = L("nk")
    a(f"s_cmp_lg_u32 {sJ}, 7"); a(f"s_cbranch_scc1 {lab}")
    a(f"s_mov_b32 {sOff}, {WS_K1}"); a(f"s_mov_b32 {sOff2}, {WS_Z1}")
    keypoll(sOff, sOff2)
    a.label(lab)
    recvY(WS_Y2)
    ZS = W[48:56]; ZK = W[56:64]
    a(f"v_lshlrev_b32 {t[0]}, 6, {vG}")
    a(f"v_lshl_add_u32 {t[0]}, {vM}, 1, {t[0]}")
    a(f"v_add_u32 {t[0]}, {L_Z}, {t[0]}")
    a(f"v_mov_b32 {t[1]}, {L_Z}")
    a(f"ds_read_b128 {t[4:8]}, {t[1]} offset:1024")
    for i in range(8): a(f"ds_read_u16_d16_hi {ZS[i]}, {t[0]} offset:{soff(i)}")
    a("s_waitcnt lgkmcnt(0)")
    a(f"v_readfirstlane_b32 {sKey}, {t[7]}")
    for i in range(8): a(f"v_mul_f32 {ZK[i]}, {ZS[i]}, {t[5]}")
    for i in range(8): a(f"v_mul_f32 {ZS[i]}, {ZS[i]}, {t[4]}")
    key2sig()
    a(f"s_mul_i32 {sT[0]}, {sA}, {sRow}")
    a(f"s_and_b32 {sT[0]}, {sT[0]}, 2047")
    a(f"v_cvt_f32_u32 {t[20]}, {sT[0]}")
    a(f"v_mul_f32 {t[20]}, {f32(1/2048)}, {t[20]}")
    a(f"v_mul_f32 {t[21]}, {vFM}, {vFG}")
    a(f"v_fmamk_f32 {t[21]}, {t[21]}, {f32(4/512)}, {t[20]}")
    quad_cs(DT[0:4], vFM, 1 / 512, t[21])
    fmamk(t[21], vFM, 16 / 512, t[21])
    quad_cs(DT[4:8], vFM, 1 / 512, t[21])

    preduce(WS_P1)
    Yr = W[0:8]; Vv = W[8:16]
    read_y(Yr)
    a("s_waitcnt lgkmcnt(0)")
    for i in range(4): a(f"v_pk_add_f32 {Vv[2*i:2*i+2]}, {Yr[2*i:2*i+2]}, {ZS[2*i:2*i+2]}")
    a(f"v_readfirstlane_b32 {sT[0]}, {Vv[0]}")
    for i in range(8): a(f"v_subrev_f32 {Vv[i]}, {sT[0]}, {Vv[i]}")
    S1, S2 = t[0:2], t[2:4]
    a(f"v_pk_mul_f32 {S2}, {Vv[0:2]}, {Vv[0:2]}")
    for i in range(1, 4):
        u = Vv[2*i:2*i+2]
        a(f"v_pk_add_f32 {S1}, {Vv[0:2] if i == 1 else S1}, {u}")
        a(f"v_pk_fma_f32 {S2}, {u}, {u}, {S2}")
    a(f"v_add_f32 {t[0]}, {t[0]}, {t[1]}")
    a(f"v_add_f32 {t[2]}, {t[2]}, {t[3]}")
    a(f"v_permlane32_swap_b32 {t[0]}, {t[2]}")
    a(f"v_add_f32 {t[0]}, {t[0]}, {t[2]}")
    reduce5([t[0]])
    a(f"v_mul_f32 {t[0]}, {sI512}, {t[0]}")
    a(f"v_readlane_b32 {sT[0]}, {t[0]}, 16")
    a(f"v_readlane_b32 {sT[1]}, {t[0]}, 48")
    a(f"v_mov_b32 {t[0]}, {sT[0]}")
    a(f"v_fma_f32 {t[1]}, -{t[0]}, {t[0]}, {sT[1]}")
    a(f"v_max_f32 {t[1]}, 0, {t[1]}")
    a(f"v_add_f32 {t[1]}, {f32(EPS)}, {t[1]}")
    a(f"v_rsq_f32 {t[1]}, {t[1]}")
    for i in range(8): a(f"v_subrev_f32 {Vv[i]}, {sT[0]}, {Vv[i]}")
    for i in range(8): a(f"v_fma_f32 {Vv[i]}, {Vv[i]}, {t[1]}, -{ZK[i]}")
    A = W[16:20]
    for b0 in range(2):
        for b2 in range(2):
            q = b0 + 2 * b2
            pk(A[2*b0 + b2], Vv[2*q], Vv[2*q+1])
    D = [W[20:24], W[24:28], W[28:32], W[32:36]]
    for b0 in range(2):
        for p in range(2):
            a(f"v_mfma_f32_16x16x16_f16 {D[2*b0+p]}, {A[2*b0:2*b0+2]}, {DB[2*p:2*p+2]}, 0")
    add_y_owner(Yr, True)
    Bf = [W[36:40], W[40:44]]
    E = [W[8:12], W[12:16]]
    twiddle(Bf[0], D[0], D[1], DT[0:4])
    for Mt in range(2): mf(E[Mt], DA2[8*Mt: 8*Mt+4], Bf[0], 0)
    twiddle(Bf[1], D[2], D[3], DT[4:8])
    for Mt in range(2): mf(E[Mt], DA2[8*Mt+4: 8*Mt+8], Bf[1], E[Mt])
    for i in range(8):
        e = E[i >> 2][i & 3]
        a(f"v_add_f32 {X[2*i]}, {X[2*i]}, {e}")
        a(f"v_add_f32 {X[2*i+1]}, {X[2*i+1]}, {e}")
    stats(True)
    route(1, WS_K2, WS_Z2)
    stamp()
    lab = L("nk2")
    a(f"s_cmp_lg_u32 {sJ}, 7"); a(f"s_cbranch_scc1 {lab}")
    a(f"s_mov_b32 {sOff}, {WS_K2}")
    keypoll(sOff, None, o["sleepK"])
    a.label(lab)
    a("s_waitcnt lgkmcnt(0)")
    a("s_barrier")
    a(f"v_mov_b32 {t[1]}, {L_Z}")
    a(f"ds_read_b32 {t[7]}, {t[1]} offset:{1024+12}")
    a("s_waitcnt lgkmcnt(0)")
    a(f"v_readfirstlane_b32 {sKey}, {t[7]}")
    key2sig()
    lab = L("nfin")
    a(f"s_cmp_lg_u32 {sSig}, s2"); a(f"s_cbranch_scc1 {lab}")
    preduce(WS_P2)
    add_y_owner(W[0:8], False)
    a.label(lab)
    P = W[16:24]
    for i in range(8): a(f"v_cvt_pk_bf16_f32 {P[i]}, {X[2*i]}, {X[2*i+1]}")
    nat_write(P, False); nat_write(P, True)
    a(f"s_lshl_b32 {sT[0]}, {sA}, 10")
    a(f"s_lshl_b32 {sT[1]}, {sB}, 10")
    a("s_waitcnt lgkmcnt(0)")
    a(f"ds_read_b128 {W[0:4]}, {aXn}")
    a(f"ds_read_b128 {W[4:8]}, {aXn} offset:1024")
    a("s_waitcnt lgkmcnt(1)")
    a(f"buffer_store_dwordx4 {W[0:4]}, {vL16}, {rOUT}, {sT[0]} offen")
    a("s_waitcnt lgkmcnt(0)")
    a(f"buffer_store_dwordx4 {W[4:8]}, {vL16}, {rOUT}, {sT[1]} offen")
    if prof:
        a("s_waitcnt vmcnt(0)")
        nts[0] = 15
        stamp()
        dump_stamps(16)
    a("s_endpgm")

    a.hist = []
    a.label("L_notR")
    a(f"s_cmp_ge_u32 s2, {NR + NF}")
    a("s_cbranch_scc1 L_helper")
    a.vn = vbase
    nts[0] = 1
    LG = a.v("LG", 32); LU = a.v("LU", 32); LD = a.v("LD", 32)
    BU = a.v("BU", 64); BD = a.v("BD", 32)
    aZ = a.v("aZ"); aH = a.v("aH"); aHr = a.v("aHr"); gP = a.v("gP")
    vmaxF = a.vn
    sF = sA
    a(f"s_sub_u32 {sF}, s2, {NR}")
    srd(rX, sPW[2:4], 512 * 3584)
    srd(rOUT, sPW[4:6], 512 * 3584)
    srd(rAUX, sPW[6:8], 1792 * 1024)
    a(f"v_lshrrev_b32 {t[0]}, 3, v0")
    a(f"v_and_b32 {t[1]}, 7, v0")
    a(f"v_mul_u32_u24 {t[2]}, 3584, {t[0]}")
    a(f"v_lshl_add_u32 {t[2]}, {t[1]}, 4, {t[2]}")
    a(f"s_lshl_b32 {sOff}, {sF}, 7")
    for i in range(8):
        a(f"buffer_load_dwordx4 {LG[4*i:4*i+4]}, {t[2]}, {rX}, {sOff} offen")
        a(f"buffer_load_dwordx4 {LU[4*i:4*i+4]}, {t[2]}, {rOUT}, {sOff} offen")
        if i < 7: a(f"s_add_u32 {sOff}, {sOff}, {64*3584}")
    a(f"s_lshl_b32 {sOff}, {sF}, 16")
    for i in range(8):
        a(f"buffer_load_dwordx4 {LD[4*i:4*i+4]}, {vT16}, {rAUX}, {sOff} offen")
        if i < 7: a(f"s_add_u32 {sOff}, {sOff}, 8192")
    a(f"v_mul_u32_u24 {t[3]}, 144, {t[0]}")
    a(f"v_lshl_add_u32 {t[3]}, {t[1]}, 4, {t[3]}")
    a(f"v_add_u32 {t[4]}, {LF_U}, {t[3]}")
    for i in range(8):
        a(f"s_waitcnt vmcnt({22 - 2*i})")
        a(f"ds_write_b128 {t[3]}, {LG[4*i:4*i+4]} offset:{9216*i}")
        a(f"ds_write_b128 {t[4]}, {LU[4*i:4*i+4]} offset:{9216*i}")
    a(f"v_lshrrev_b32 {t[5]}, 2, {vM}")
    a(f"v_lshl_add_u32 {t[5]}, {vG}, 3, {t[5]}")
    a(f"v_and_b32 {t[6]}, 1, {vM}")
    a(f"v_bfe_u32 {t[7]}, {vM}, 1, 1")
    a(f"v_mul_u32_u24 {t[8]}, 144, {t[5]}")
    a(f"v_lshl_add_u32 {t[8]}, {t[6]}, 3, {t[8]}")
    a(f"v_mul_u32_u24 {t[7]}, {LF_U}, {t[7]}")
    a(f"s_lshl_b32 {sT[0]}, {sJ}, 4")
    a(f"v_add3_u32 {t[8]}, {t[8]}, {t[7]}, {sT[0]}")
    a(f"v_add_u32 {t[9]}, {8*32*144}, {t[8]}")
    a("s_waitcnt lgkmcnt(0)")
    a("s_barrier")
    for k in range(16):
        for h in range(2):
            a(f"ds_read_b64_tr_b16 {BU[4*k+2*h:4*k+2*h+2]}, {t[8] if k < 8 else t[9]} offset:{((k&7)*32 + 4*h)*144}")
        if k % 4 == 3: a("s_waitcnt lgkmcnt(0)")
    a("s_barrier")
    a(f"s_mul_i32 {sT[0]}, {sJ}, {DSTR}")
    a(f"v_add_u32 {t[3]}, {sT[0]}, {vL16}")
    a("s_waitcnt vmcnt(0)")
    for i in range(8):
        a(f"ds_write_b128 {t[3]}, {LD[4*i:4*i+4]} offset:{8*DSTR*i}")
    a(f"v_mul_u32_u24 {t[8]}, {DSTR}, {t[5]}")
    a(f"v_and_b32 {t[6]}, 3, {vM}")
    a(f"v_lshl_add_u32 {t[8]}, {t[6]}, 3, {t[8]}")
    a(f"s_lshl_b32 {sT[0]}, {sJ}, 7")
    a(f"v_add_u32 {t[8]}, {sT[0]}, {t[8]}")
    a("s_waitcnt lgkmcnt(0)")
    a("s_barrier")
    for tau in range(4):
        for k in range(2):
            for h in range(2):
                b = 8*tau + 4*k + 2*h
                a(f"ds_read_b64_tr_b16 {BD[b:b+2]}, {t[8]} offset:{(32*k + 4*h)*DSTR + 32*tau}")
        if tau % 2 == 1: a("s_waitcnt lgkmcnt(0)")
    a(f"v_lshlrev_b32 {aZ}, 6, {vM}")
    a(f"v_lshl_add_u32 {aZ}, {vG}, 4, {aZ}")
    a(f"v_add_u32 {aZ}, {L_Z}, {aZ}")
    a(f"s_lshl_b32 {sT[0]}, {sJ}, 4")
    a(f"s_add_u32 {sT[0]}, {sT[0]}, {L_H}")
    a(f"v_lshl_add_u32 {aH}, {vLane}, 1, {sT[0]}")
    a(f"v_lshlrev_b32 {aHr}, 4, {vG}")
    a(f"v_add_u32 {aHr}, {L_H}, {aHr}")
    a(f"s_lshl_b32 {sT[0]}, {sF}, 10")
    a(f"s_lshl_b32 {sT[1]}, {sJ}, 7")
    a(f"s_add_u32 {sT[0]}, {sT[0]}, {sT[1]}")
    a(f"v_lshl_add_u32 {gP}, {vLane}, 3, {sT[0]}")
    MK = [sP, sQ, sQ2, sM]
    for gp in range(4):
        m = 0x000f000f << (4 * gp)
        a(f"s_mov_b32 {MK[gp][0]}, {m:#x}"); a(f"s_mov_b32 {MK[gp][1]}, {m:#x}")
    stamp()
    lab = L("nfl")
    a(f"s_cmp_lg_u32 {sJ}, 0"); a(f"s_cbranch_scc1 {lab}")
    wait_flag()
    a.label(lab)
    LOG2E = 1.4426950408889634
    for layer, (kb, zb, pb) in enumerate(((WS_K1, WS_Z1, WS_P1), (WS_K2, WS_Z2, WS_P2))):
        lab = L("nkf")
        a(f"s_cmp_lg_u32 {sJ}, 0"); a(f"s_cbranch_scc1 {lab}")
        a(f"s_mov_b32 {sOff}, {kb}"); a(f"s_mov_b32 {sOff2}, {zb}")
        keypoll(sOff, sOff2)
        a.label(lab)
        a(f"v_mov_b32 {t[0]}, {L_Z}")
        a("s_waitcnt lgkmcnt(0)")
        a("s_barrier")
        stamp()
        a(f"ds_read_b128 {t[4:8]}, {aZ}")
        a(f"ds_read_b32 {t[1]}, {t[0]} offset:{1024+8}")
        AM = LG[0:16]; D = LU[0:16]
        a("s_waitcnt lgkmcnt(1)")
        for gp in range(4):
            for x in range(4): a(f"v_cndmask_b32_e64 {AM[4*gp+x]}, 0, {t[4+x]}, {MK[gp]}")
            for r in range(4):
                k = 4*gp + r
                a(f"v_mfma_f32_16x16x32_bf16 {D[4*r:4*r+4]}, {AM[4*gp:4*gp+4]}, {BU[4*k:4*k+4]}, {0 if gp == 0 else D[4*r:4*r+4]}")
        a("s_waitcnt lgkmcnt(0)")
        a(f"v_mul_f32 {t[1]}, {f32(-LOG2E)}, {t[1]}")
        a(f"v_exp_f32 {t[1]}, {t[1]}")
        a(f"v_add_f32 {t[1]}, 1.0, {t[1]}")
        a(f"v_rcp_f32 {t[1]}, {t[1]}")
        a(f"v_add_f32 {t[2]}, {D[0]}, {D[5]}")
        a(f"v_add_f32 {t[3]}, {D[10]}, {D[15]}")
        a(f"v_add_f32 {t[2]}, {t[2]}, {t[3]}")
        a(f"v_mov_b32 {t[3]}, {t[2]}")
        a(f"v_permlane32_swap_b32 {t[2]}, {t[3]}")
        a(f"v_add_f32 {t[2]}, {t[2]}, {t[3]}")
        a(f"v_mov_b32 {t[3]}, {t[2]}")
        a(f"v_permlane16_swap_b32 {t[2]}, {t[3]}")
        a(f"v_add_f32 {t[2]}, {t[2]}, {t[3]}")
        a(f"v_mul_f32 {t[3]}, {f32(-LOG2E)}, {t[2]}")
        a(f"v_exp_f32 {t[3]}, {t[3]}")
        a(f"v_mul_f32_dpp {t[4]}, {t[2]}, {t[2]} row_ror:8 row_mask:0xf bank_mask:0xf")
        a(f"v_add_f32 {t[3]}, 1.0, {t[3]}")
        a(f"v_rcp_f32 {t[3]}, {t[3]}")
        a(f"v_mul_f32 {t[4]}, {t[4]}, {t[3]}")
        a(f"v_cvt_pk_bf16_f32 {t[4]}, {t[4]}, {t[4]}")
        a(f"s_mov_b64 exec, 0xff")
        a(f"ds_write_b16 {aH}, {t[4]}")
        a(f"s_mov_b64 exec, -1")
        a("s_waitcnt lgkmcnt(0)")
        a("s_barrier")
        a(f"ds_read_b128 {t[4:8]}, {aHr}")
        a(f"ds_read_b128 {t[8:12]}, {aHr} offset:64")
        a(f"s_mov_b32 {sOff}, {pb}")
        a("s_waitcnt lgkmcnt(1)")
        for tau in range(4):
            a(f"v_mfma_f32_16x16x32_bf16 {D[4*tau:4*tau+4]}, {t[4:8]}, {BD[8*tau:8*tau+4]}, 0")
        a("s_waitcnt lgkmcnt(0)")
        for tau in range(4):
            a(f"v_mfma_f32_16x16x32_bf16 {D[4*tau:4*tau+4]}, {t[8:12]}, {BD[8*tau+4:8*tau+8]}, {D[4*tau:4*tau+4]}")
        for tau in range(4): a(f"v_mul_f32 {t[12+tau]}, {D[4*tau]}, {t[1]}")
        a(f"v_cvt_pk_bf16_f32 {t[12]}, {t[12]}, {t[13]}")
        a(f"v_cvt_pk_bf16_f32 {t[13]}, {t[14]}, {t[15]}")
        a(f"s_mov_b64 exec, 0xffff")
        a(f"buffer_store_dwordx2 {t[12:14]}, {gP}, {rWS}, {sOff} offen sc1")
        a(f"s_mov_b64 exec, -1")
        stamp()
    if prof:
        dump_stamps(nts[0])
    a("s_endpgm")

    a.hist = []
    a.label("L_helper")
    nts[0] = 1
    for i in range(4): a(f"v_mov_b32 {t[4+i]}, -1")
    a(f"s_sub_u32 {sOff}, s2, {NR + NF}")
    a(f"s_lshl_b32 {sOff}, {sOff}, 13")
    for i in range(HROUNDS):
        a(f"buffer_store_dwordx4 {t[4:8]}, {vT16}, {rWS}, {sOff} offen sc1")
        if i < HROUNDS - 1: a(f"s_add_u32 {sOff}, {sOff}, {NH*8192}")
    a("s_waitcnt vmcnt(0)")
    a("s_barrier")
    a(f"s_cmp_lg_u32 {sJ}, 0"); a("s_cbranch_scc1 L_end")
    a(f"v_mov_b32 {t[0]}, 0"); a(f"v_mov_b32 {t[1]}, 1")
    a(f"s_mov_b64 exec, 1")
    a(f"buffer_atomic_add {t[1]}, {t[0]}, {rDBG}, 0 offen sc1")
    if prof:
        a("s_waitcnt vmcnt(0)")
        stamp()
        dump_stamps(2)
    a.label("L_end")
    a("s_endpgm")

    nv = max(vmaxR, vmaxF)
    assert nv <= 256, nv
    hdr = open("interleave_layers__spectral_fnet__moe_arch_mod__prompt.s.ref").read().split("; Override")[0]
    txt = hdr + f"""; @launch grid=({NWG},1,1) block=(512,1,1) lds={LDS_BYTES}
.amdgcn_target "amdgcn-amd-amdhsa--gfx950"
.text
.globl {KN}
.p2align 8
.type {KN},@function
{KN}:
""" + a.text() + f""".section .rodata,"a"
.p2align 6
.amdhsa_kernel {KN}
  .amdhsa_next_free_vgpr 256
  .amdhsa_next_free_sgpr 102
  .amdhsa_accum_offset 256
  .amdhsa_group_segment_fixed_size 0
  .amdhsa_kernarg_size 104
  .amdhsa_user_sgpr_count 2
  .amdhsa_user_sgpr_kernarg_segment_ptr 1
  .amdhsa_system_sgpr_workgroup_id_x 1
.end_amdhsa_kernel
"""
    return txt, dict(vR=vmaxR, vF=vmaxF, sn=a.sn, nops=a.nops, lines=len(a.lines))

if __name__ == "__main__":
    txt, info = build(prof=False)
    open("k.s", "w").write(txt)
    print(info)
    txt, info = build(prof=True)
    open("kp.s", "w").write(txt)
```

```python
import sys
from asmlib import *

KN = "interleave_layers__spectral_fnet__moe_arch_mod__prompt_kernel"
NR, NF, NH = 129, 28, 32
NWG = NR + NF + NH
R0, F0, H0 = 0, NR, NR + NF
AIN = 8320
WS_A1 = 0
KSTR = 128
WS_K1 = WS_A1 + 128 * AIN
WS_K2 = WS_K1 + 129 * KSTR
ZSTR = 1152
WS_Z1 = WS_K2 + 129 * KSTR
WS_Z2 = WS_Z1 + 129 * ZSTR
WS_P1 = WS_Z2 + 129 * ZSTR
WS_P2 = WS_P1 + 28 * 1024
WS_HEND = WS_P2 + 28 * 1024
HROUNDS = -(-WS_HEND // (NH * 512 * 16))
assert HROUNDS * NH * 512 * 16 <= 0x200000
WS_Y1 = 0x200000
WS_A2 = 0x400000
WS_Y2 = 0x600000
WS_PROF = 0x1000000
WS_SIZE = 0x2000000
L_XB = 0
L_RA = 24576
L_RY = L_RA + 8448
L_CI = L_RY + 8448
PL = 2304
L_CO = L_CI + 4 * PL
PL2 = 4096 + 128
L_YV = L_CO + 2 * PL2
assert L_CI % 256 == 0
LF_G = 0
LF_U = 73728 + 64
LF_D = 0
DSTR = 1024 + 32
L_Z = 147712
L_KMAX = L_Z + 1088
L_H = L_KMAX + 64
LDS_BYTES = L_H + 128
SPIN = 1 << 16
EPS = 1e-5

def build(prof=False, opts=None):
    o = dict(sleepA=0, sleepY=0, sleepP=0, sleepK=0)
    o.update(opts or {})
    a = Asm()
    uid = [0]
    def L(n):
        uid[0] += 1
        return f"L_{n}_{uid[0]}"
    a.sn = 3
    sJ = a.s("J")
    sPX = a.s("PX", 2); sPWS = a.s("PWS", 2)
    sPW = a.s("PW", 8)
    sPO = a.s("PO", 4)
    rWS = a.s("rWS", 4); rX = a.s("rX", 4); rOUT = a.s("rOUT", 4); rDBG = a.s("rDBG", 4); rAUX = a.s("rAUX", 4)
    sA = a.s("A"); sB = a.s("B"); sGam = a.s("Gam"); sSW = a.s("SW")
    sP = a.s("P", 2); sQ = a.s("Q", 2); sQ2 = a.s("Q2", 2); sE = a.s("E", 2); sM = a.s("M", 2)
    sT = [a.s(f"T{i}") for i in range(8)]
    sSpin = a.s("Spin"); sKey = a.s("Key"); sRow = a.s("Row"); sSig = a.s("Sig")
    sI512 = a.s("I512"); s32 = a.s("c32"); sOff = a.s("Off"); sOff2 = a.s("Off2")
    sL0 = a.s("L0", 2)
    sLay = a.s("Lay")
    if prof:
        ts0 = a.s("TS", 16, align=2)
        TSP = [ts0[2*i:2*i+2] for i in range(8)] + [sPW[2*i:2*i+2] for i in range(4)] + [sPO[0:2], sPO[2:4], sPX, sPWS]
    nts = [0]
    def stamp():
        if prof:
            a(f"s_memrealtime {TSP[nts[0]]}")
            nts[0] += 1
    def dump_stamps(n):
        if not prof: return
        a("s_waitcnt lgkmcnt(0)")
        lab = L("nost")
        a(f"s_cmp_lg_u32 {sJ}, 0"); a(f"s_cbranch_scc1 {lab}")
        a(f"s_lshl_b32 {sT[0]}, s2, 6"); a(f"s_add_u32 {sT[0]}, {sT[0]}, {WS_PROF}")
        a(f"s_mov_b64 exec, 1")
        a(f"v_mov_b32 v1, 0")
        for i in range(n):
            a(f"v_mov_b32 v2, {TSP[i][0]}")
            a(f"buffer_store_dword v2, v1, {rWS}, {sT[0]} offen offset:{4*i}")
        if o.get("dbgwg") is not None:
            a(f"s_cmp_lg_u32 s2, {o['dbgwg']}"); a(f"s_cbranch_scc1 {lab}")
            for i in range(1, n):
                a(f"s_sub_u32 {sT[1]}, {TSP[i][0]}, {TSP[0][0]}")
                a(f"v_mov_b32 v2, {sT[1]}")
                a(f"buffer_store_dword v2, v1, {rDBG}, 0 offen offset:{4*i}")
        a.label(lab)

    def srd(r, p, size):
        a(f"s_mov_b32 {r[0]}, {p[0]}"); a(f"s_mov_b32 {r[1]}, {p[1]}")
        a(f"s_mov_b32 {r[2]}, {size}"); a(f"s_mov_b32 {r[3]}, 0x20000")

    a.vn = 1
    vLane = a.v("lane"); vM = a.v("m"); vG = a.v("g"); vFM = a.v("fm"); vFG = a.v("fg")
    vT16 = a.v("tid16"); vL16 = a.v("lane16")
    t = a.v("t", 24, align=4)
    vbase = a.vn

    def poll(loads, chk, sleep=0):
        lp, dn = L("poll"), L("polld")
        a(f"s_mov_b64 {sE}, exec")
        a(f"s_mov_b32 {sSpin}, {SPIN}")
        if sleep: a(f"s_sleep {sleep}")
        a.label(lp)
        for l in loads: a(l)
        a("s_waitcnt vmcnt(0)")
        c = list(chk); acc = c.pop(0)
        while c:
            if len(c) >= 2:
                a(f"v_max3_u32 {t[23]}, {acc}, {c[0]}, {c[1]}"); c = c[2:]
            else:
                a(f"v_max_u32 {t[23]}, {acc}, {c[0]}"); c = c[1:]
            acc = t[23]
        a(f"v_cmp_eq_u32 vcc, -1, {acc}")
        a(f"s_sub_u32 {sSpin}, {sSpin}, 1")
        a(f"s_cbranch_scc1 {dn}")
        a(f"s_and_b64 exec, exec, vcc")
        a(f"s_cbranch_execnz {lp}")
        a.label(dn)
        a(f"s_mov_b64 exec, {sE}")

    def wait_flag():
        lp, dn = L("flag"), L("flagd")
        a(f"s_mov_b32 {sSpin}, {SPIN}")
        a(f"v_mov_b32 {t[22]}, 0")
        a.label(lp)
        a(f"buffer_load_dword {t[23]}, {t[22]}, {rDBG}, 0 offen sc1")
        a("s_waitcnt vmcnt(0)")
        a(f"v_cmp_gt_u32 vcc, {NH}, {t[23]}")
        a(f"s_sub_u32 {sSpin}, {sSpin}, 1")
        a(f"s_cbranch_scc1 {dn}")
        a(f"s_cbranch_vccnz {lp}")
        a.label(dn)

    def keypoll(koff, zoff, sleep=0):
        a(f"v_lshlrev_b32 {t[0]}, 7, {vLane}")
        a(f"v_add_u32 {t[1]}, {64*KSTR}, {t[0]}")
        a(f"v_mov_b32 {t[2]}, {128*KSTR}")
        poll([f"buffer_load_dword {t[4]}, {t[0]}, {rWS}, {koff} offen sc1",
              f"buffer_load_dword {t[5]}, {t[1]}, {rWS}, {koff} offen sc1",
              f"buffer_load_dword {t[6]}, {t[2]}, {rWS}, {koff} offen sc1"], [t[4], t[5], t[6]], sleep)
        k = t[23]
        for c in ("row_ror:8", "row_ror:4", "row_ror:2", "row_ror:1"):
            a(f"v_max_u32_dpp {k}, {k}, {k} {c} row_mask:0xf bank_mask:0xf")
        a(f"v_max_u32_dpp {k}, {k}, {k} row_bcast:15 row_mask:0xa bank_mask:0xf")
        a(f"v_max_u32_dpp {k}, {k}, {k} row_bcast:31 row_mask:0xc bank_mask:0xf")
        a(f"v_readlane_b32 {sKey}, {k}, 63")
        if zoff is not None:
            key2sig()
            a(f"s_mul_i32 {sT[0]}, {sSig}, {ZSTR}")
            a(f"s_add_u32 {sT[0]}, {sT[0]}, {zoff}")
            a(f"v_mov_b32 {t[2]}, 1024")
            poll([f"buffer_load_dwordx4 {t[4:8]}, {vL16}, {rWS}, {sT[0]} offen sc1",
                  f"buffer_load_dwordx4 {t[8:12]}, {t[2]}, {rWS}, {sT[0]} offen sc1"], [t[i] for i in range(4, 12)])
            a(f"v_add_u32 {t[0]}, {L_Z}, {vL16}")
            a(f"ds_write_b128 {t[0]}, {t[4:8]}")
        a(f"v_mov_b32 {t[11]}, {sKey}")
        a(f"v_mov_b32 {t[0]}, {L_Z}")
        a(f"s_mov_b64 exec, 1")
        a(f"ds_write_b128 {t[0]}, {t[8:12]} offset:1024")
        a(f"s_mov_b64 exec, -1")

    def key2sig():
        a(f"s_and_b32 {sRow}, {sKey}, 2047")
        a(f"s_sub_u32 {sRow}, 2047, {sRow}")
        a(f"s_and_b32 {sSig}, {sRow}, 255")
        a(f"s_sub_u32 {sT[1]}, 256, {sSig}")
        a(f"s_min_u32 {sSig}, {sSig}, {sT[1]}")

    a(f"s_cmp_ge_u32 s2, {NWG}")
    a("s_cbranch_scc1 L_end")
    stamp()
    a(f"s_load_dwordx2 {sPX}, s[0:1], 0")
    a(f"s_load_dwordx2 {sPWS}, s[0:1], 96")
    a(f"s_load_dwordx8 {sPW}, s[0:1], 48")
    a(f"s_load_dwordx4 {sPO}, s[0:1], 80")
    a(f"v_lshrrev_b32 {t[0]}, 6, v0")
    a(f"v_and_b32 {vLane}, 63, v0")
    a(f"v_readfirstlane_b32 {sJ}, {t[0]}")
    a(f"v_lshlrev_b32 {vT16}, 4, v0")
    a(f"v_lshlrev_b32 {vL16}, 4, {vLane}")
    a(f"v_and_b32 {vM}, 15, v0")
    a(f"v_lshrrev_b32 {vG}, 4, {vLane}")
    a(f"s_lshl_b32 {sA}, {sJ}, 8")
    a(f"s_add_u32 {sA}, {sA}, s2")
    a(f"s_sub_u32 {sB}, 2048, {sA}")
    a(f"s_and_b32 {sB}, {sB}, 2047")
    a(f"s_lshl_b32 {sT[0]}, {sA}, 10")
    a(f"s_lshl_b32 {sT[1]}, {sB}, 10")
    a("s_waitcnt lgkmcnt(0)")
    srd(rX, sPX, 2097152)
    srd(rWS, sPWS, WS_SIZE)
    srd(rDBG, sPO[2:4], 256)
    srd(rOUT, sPO[0:2], 2097152)
    srd(rAUX, sPW[0:2], 1024)
    a(f"s_cmp_ge_u32 s2, {NR}")
    a("s_cbranch_scc1 L_notR")

    X = a.v("X", 16); WR = a.v("WR", 16)
    DA2 = a.v("DA2", 16)
    RB = DA2[0:8]
    RA2 = DA2[8:12]; RA2X = DA2[12:16]
    RT = a.v("RT", 8)
    DT = RT
    CB = a.v("CB", 24)
    CT = a.v("CT", 8); CA2 = a.v("CA2", 16)
    DB = a.v("DB", 4)
    aXa = a.v("aXa"); aXb = a.v("aXb"); aXb0 = a.v("aXb0"); aXn = a.v("aXn")
    aRw = a.v("aRw"); aRr = a.v("aRr"); aRr2 = a.v("aRr2"); aYm0 = a.v("aYm0"); aYm1 = a.v("aYm1")
    gA = a.v("gA"); gY = a.v("gY"); aCIw = a.v("aCIw"); aC0 = a.v("aC0"); aC1 = a.v("aC1"); aCx0 = a.v("aCx0"); aCx1 = a.v("aCx1")
    aCOw = a.v("aCOw"); aCOr = a.v("aCOr"); vRowc = a.v("rowc"); vMask0 = a.v("mask0"); vRot0 = a.v("rot0")
    vKey = a.v("rec", 4)
    W = a.v("W", 80, align=4)
    U = W[64:80]
    vmaxR = a.vn

    a(f"buffer_load_dwordx4 {W[0:4]}, {vL16}, {rX}, {sT[0]} offen")
    a(f"buffer_load_dwordx4 {W[4:8]}, {vL16}, {rX}, {sT[1]} offen")
    a(f"buffer_load_dwordx4 {W[8:12]}, {vL16}, {rAUX}, 0 offen")
    for i in range(4): a(f"v_mov_b32 {t[4+i]}, -1")
    a(f"s_lshl_b32 {sT[2]}, s2, 13")
    a(f"s_add_u32 {sT[3]}, {sT[2]}, {WS_Y1}")
    a(f"s_add_u32 {sT[4]}, {sT[2]}, {WS_Y2}")
    a(f"s_mul_i32 {sT[5]}, s2, {AIN}")
    a(f"s_add_u32 {sT[5]}, {sT[5]}, {WS_A2}")
    a(f"v_and_b32 {t[0]}, 0x70, {vT16}")
    a(f"v_add_u32 {t[0]}, 8192, {t[0]}")
    a(f"buffer_store_dwordx4 {t[4:8]}, {vT16}, {rWS}, {sT[3]} offen sc1")
    a(f"buffer_store_dwordx4 {t[4:8]}, {vT16}, {rWS}, {sT[5]} offen sc1")
    a(f"buffer_store_dwordx4 {t[4:8]}, {vT16}, {rWS}, {sT[4]} offen sc1")
    a(f"s_mov_b64 exec, 0xff")
    a(f"buffer_store_dwordx4 {t[4:8]}, {t[0]}, {rWS}, {sT[5]} offen sc1")
    a(f"s_mov_b64 exec, -1")
    a(f"s_mov_b32 {sI512}, {f32(1/512)}")
    a(f"s_mov_b32 {s32}, {f32(32.0)}")
    a(f"s_and_b32 {sT[2]}, s2, 127")
    a(f"s_cmp_eq_u32 {sT[2]}, 0")
    a(f"s_cselect_b32 {sGam}, 0.5, 1.0")
    a(f"s_mov_b64 {sL0}, 1")
    a(f"v_cvt_f32_u32 {vFM}, {vM}")
    a(f"v_cvt_f32_u32 {vFG}, {vG}")

    def cs(dc, ds, ang, negs=False):
        a(f"v_cos_f32 {dc}, {ang}")
        a(f"v_sin_f32 {ds}, {'-' if negs else ''}{ang}" if not negs else f"v_sin_f32_e64 {ds}, -{ang}")
    def pk(d, lo, hi): a(f"v_cvt_pk_f16_f32 {d}, {lo}, {hi}")
    def fmamk(d, x, k, y):
        if k == 0: a(f"v_mov_b32 {d}, {y}")
        else: a(f"v_fmamk_f32 {d}, {x}, {f32(k)}, {y}")

    def quad_cs(dst, x, k, base, scale=None):
        for r in range(4):
            fmamk(t[r], x, k * r, base)
        for r in range(4):
            cs(t[4 + r], t[8 + r], t[r])
        if scale:
            for r in range(8): a(f"v_mul_f32 {t[4+r]}, {f32(scale)}, {t[4+r]}")
        pk(dst[0], t[4], t[5]); pk(dst[1], t[6], t[7]); pk(dst[2], t[8], t[9]); pk(dst[3], t[10], t[11])

    a(f"v_mul_f32 {t[20]}, {vFM}, {vFG}")
    a(f"v_mul_f32 {t[21]}, {f32(1/16)}, {t[20]}")
    for q in range(4):
        b0, b2 = q & 1, q >> 1
        for b1 in range(2):
            fmamk(t[b1], vFM, (b0 + 8 * b1 + 16 * b2) / 32, t[21])
        for b1 in range(2):
            cs(t[2 + b1], t[4 + b1], t[b1], negs=True)
        pk(RB[q], t[2], t[3]); pk(RB[4 + q], t[4], t[5])
    a(f"v_mul_f32 {t[21]}, {f32(4/512)}, {t[20]}")
    quad_cs(RT[0:4], vFM, 1 / 512, t[21])
    a(f"v_add_f32 {t[19]}, {f32(16.0)}, {vFM}")
    a(f"v_mul_f32 {t[21]}, {t[19]}, {vFG}")
    a(f"v_mul_f32 {t[21]}, {f32(4/512)}, {t[21]}")
    quad_cs(RT[4:8], t[19], 1 / 512, t[21])
    a(f"v_lshrrev_b32 {t[16]}, 2, {vM}")
    a(f"v_and_b32 {t[17]}, 2, {vM}")
    a(f"v_lshl_add_u32 {t[16]}, {t[17]}, 1, {t[16]}")
    a(f"v_cvt_f32_u32 {t[19]}, {t[16]}")
    a(f"v_and_b32 {t[17]}, 1, {vM}")
    a(f"v_cvt_f32_u32 {t[17]}, {t[17]}")
    a(f"v_fma_f32 {t[21]}, {t[19]}, {vFG}, {t[17]}")
    a(f"v_mul_f32 {t[21]}, 0.25, {t[21]}".replace("0.25", f32(0.25)))
    quad_cs(RA2, t[19], 1 / 16, t[21])
    a(f"v_mov_b32 {RA2X[0]}, 0xbc003c00"); a(f"v_mov_b32 {RA2X[1]}, 0xbc003c00")
    a(f"v_mov_b32 {RA2X[2]}, 0"); a(f"v_mov_b32 {RA2X[3]}, 0")
    a(f"s_mul_i32 {sT[2]}, {sJ}, 3072")
    a(f"v_add_u32 {aXn}, {sT[2]}, {vL16}")
    a(f"v_lshlrev_b32 {t[0]}, 6, {vG}")
    a(f"v_lshl_add_u32 {t[0]}, {vM}, 1, {t[0]}")
    a(f"v_add_u32 {aXa}, {sT[2]}, {t[0]}")
    a(f"v_sub_u32 {t[1]}, 1024, {t[0]}")
    a(f"v_and_b32 {t[2]}, 1023, {t[1]}")
    a(f"v_add_u32 {aXb0}, {sT[2]}, {t[2]}")
    a(f"s_sub_u32 {sT[3]}, {sT[2]}, 800")
    a(f"v_add_u32 {aXb}, {sT[3]}, {t[1]}")
    a(f"s_mul_i32 {sT[2]}, {sJ}, 520")
    a(f"v_lshl_add_u32 {aRw}, {t[0]}, 1, {sT[2]}")
    a(f"v_and_b32 {t[3]}, 3, v0")
    a(f"v_mul_u32_u24 {t[4]}, 2080, {t[3]}")
    a(f"v_and_b32 {t[5]}, 0x1fc, v0")
    a(f"v_add_u32 {aRr}, {t[4]}, {t[5]}")
    a(f"v_add_u32 {aRr2}, 1040, {aRr}")
    a(f"s_sub_u32 {sT[2]}, 7, {sJ}")
    a(f"s_sub_u32 {sT[3]}, 8, {sJ}")
    a(f"s_and_b32 {sT[3]}, {sT[3]}, 7")
    a(f"s_cmp_eq_u32 s2, 0")
    a(f"s_cselect_b32 {sT[2]}, {sT[3]}, {sT[2]}")
    a(f"s_mul_i32 {sT[2]}, {sT[2]}, 520")
    a(f"s_add_u32 {sT[2]}, {sT[2]}, {L_RY + 8*520}")
    a(f"v_lshlrev_b32 {t[4]}, 1, {t[0]}")
    a(f"v_sub_u32 {t[5]}, 512, {t[4]}")
    a(f"v_and_b32 {t[6]}, 511, {t[5]}")
    a(f"v_add_u32 {aYm0}, {sT[2]}, {t[6]}")
    a(f"s_sub_u32 {sT[2]}, {sT[2]}, 64")
    a(f"v_add_u32 {aYm1}, {sT[2]}, {t[5]}")
    a(f"v_lshrrev_b32 {t[4]}, 2, v0")
    a(f"v_mul_u32_u24 {gA}, {AIN}, {t[4]}")
    a(f"v_lshlrev_b32 {t[5]}, 4, {t[3]}")
    a(f"s_lshl_b32 {sT[2]}, s2, 6")
    a(f"v_add3_u32 {gA}, {gA}, {t[5]}, {sT[2]}")
    a(f"v_lshlrev_b32 {gY}, 13, {t[4]}")
    a(f"v_add3_u32 {gY}, {gY}, {t[5]}, {sT[2]}")
    a(f"s_sub_u32 {sT[2]}, 2047, {sA}")
    a(f"s_sub_u32 {sT[3]}, 2047, {sB}")
    a(f"v_mov_b32 {vRowc}, {sT[2]}")
    a(f"v_mov_b32 {t[6]}, {sT[3]}")
    a(f"v_cmp_lt_u32 vcc, 31, {vLane}")
    a(f"v_cndmask_b32 {vRowc}, {vRowc}, {t[6]}, vcc")
    a(f"v_mov_b32 {t[6]}, 0xffff0000")
    a(f"v_cndmask_b32_e64 {vMask0}, -1, {t[6]}, {sL0}")
    a(f"v_cndmask_b32_e64 {vRot0}, 0, 16, {sL0}")

    def soff(i):
        b1, b0, b2 = i & 1, (i >> 1) & 1, i >> 2
        return 32 * b0 + 256 * b1 + 512 * b2
    def read_rows(dst, offa, offb):
        for i in range(8):
            a(f"ds_read_u16_d16_hi {dst[2*i]}, {aXa} offset:{offa + soff(i)}")
            if i == 0: a(f"ds_read_u16_d16_hi {dst[1]}, {aXb0} offset:{offb}")
            else: a(f"ds_read_u16_d16_hi {dst[2*i+1]}, {aXb} offset:{offb + 800 - soff(i)}")

    a("s_waitcnt vmcnt(4)")
    stamp()
    a(f"ds_write_b128 {aXn}, {W[0:4]}")
    a(f"ds_write_b128 {aXn}, {W[4:8]} offset:1024")
    a(f"ds_write_b128 {aXn}, {W[8:12]} offset:2048")
    a("s_waitcnt lgkmcnt(0)")
    read_rows(X, 0, 1024)
    a("s_waitcnt lgkmcnt(0)")

    def reduce5(regs):
        for c in ("row_ror:8", "row_ror:4", "row_ror:2", "row_ror:1"):
            for r in regs: a(f"v_add_f32_dpp {r}, {r}, {r} {c} row_mask:0xf bank_mask:0xf")
        for r in regs: a(f"v_add_f32_dpp {r}, {r}, {r} row_bcast:15 row_mask:0xa bank_mask:0xf")

    def stats(dot):
        a(f"v_readfirstlane_b32 {sP[0]}, {X[0]}")
        a(f"v_readfirstlane_b32 {sP[1]}, {X[1]}")
        S1, S2, S3 = t[0:2], t[2:4], t[4:6]
        for i in range(8):
            a(f"v_pk_add_f32 {U[2*i:2*i+2]}, {X[2*i:2*i+2]}, {sP} neg_lo:[0,1] neg_hi:[0,1]")
        a(f"v_pk_mul_f32 {S2}, {U[0:2]}, {U[0:2]}")
        if dot: a(f"v_pk_mul_f32 {S3}, {U[0:2]}, {WR[0:2]}")
        for i in range(1, 8):
            u = U[2*i:2*i+2]
            a(f"v_pk_add_f32 {S1}, {U[0:2] if i == 1 else S1}, {u}")
            a(f"v_pk_fma_f32 {S2}, {u}, {u}, {S2}")
            if dot: a(f"v_pk_fma_f32 {S3}, {u}, {WR[2*i:2*i+2]}, {S3}")
        SS = [S1, S2] + ([S3] if dot else [])
        for S in SS: a(f"v_permlane32_swap_b32 {S[0]}, {S[1]}")
        for S in SS: a(f"v_add_f32 {S[0]}, {S[0]}, {S[1]}")
        reduce5([S[0] for S in SS])
        a(f"v_mul_f32 {t[0]}, {sI512}, {t[0]}")
        a(f"v_mul_f32 {t[1]}, {t[0]}, {t[0]}")
        a(f"v_fma_f32 {t[2]}, {t[2]}, {sI512}, -{t[1]}")
        a(f"v_max_f32 {t[2]}, 0, {t[2]}")
        a(f"v_add_f32 {t[3]}, {f32(EPS)}, {t[2]}")
        a(f"v_rsq_f32 {t[1]}, {t[3]}")

    def twiddle(dst, re, im, tw):
        x = t[12:16]
        pk(x[0], re[0], re[1]); pk(x[1], re[2], re[3]); pk(x[2], im[0], im[1]); pk(x[3], im[2], im[3])
        for h in range(2):
            a(f"v_pk_mul_f16 {dst[h]}, {x[h]}, {tw[h]}")
            a(f"v_pk_mul_f16 {dst[2+h]}, {x[2+h]}, {tw[h]}")
        for h in range(2):
            a(f"v_pk_fma_f16 {dst[h]}, {x[2+h]}, {tw[2+h]}, {dst[h]}")
            a(f"v_pk_fma_f16 {dst[2+h]}, {x[h]}, {tw[2+h]}, {dst[2+h]} neg_lo:[1,0,0] neg_hi:[1,0,0]")

    def mf(d, A, B, C): a(f"v_mfma_f32_16x16x32_f16 {d}, {A}, {B}, {C}")

    def sendA(coef, base, first):
        a(f"v_mul_f32 {coef}, {sGam}, {coef}")
        a(f"v_mul_f32 {t[6]}, {coef}, {t[0]}")
        a(f"v_readlane_b32 {sQ[0]}, {coef}, 16")
        a(f"v_readlane_b32 {sQ[1]}, {coef}, 48")
        a(f"v_readlane_b32 {sQ2[0]}, {t[6]}, 16")
        a(f"v_readlane_b32 {sQ2[1]}, {t[6]}, 48")
        a(f"v_mov_b32 {t[6]}, {sQ2[0]}")
        a(f"v_add_f32 {t[6]}, {sQ2[1]}, {t[6]}")
        w = W[0:8]
        for i in range(8): a(f"v_fma_f32 {w[i]}, {U[2*i+1]}, {sQ[1]}, -{t[6]}")
        for i in range(8): a(f"v_fmac_f32 {w[i]}, {sQ[0]}, {U[2*i]}")
        A0, A1 = W[8:12], W[12:16]
        for q in range(4): pk(A0[q], w[2*q], w[2*q+1])
        D = [W[16:20], W[20:24], W[24:28], W[28:32]]
        a(f"v_mov_b32 {A1[0]}, {A0[0]}")
        a(f"v_xor_b32 {A1[1]}, 0x80008000, {A0[1]}")
        mf(D[0], A0, RB[0:4], 0)
        a(f"v_mov_b32 {A1[2]}, {A0[2]}")
        a(f"v_xor_b32 {A1[3]}, 0x80008000, {A0[3]}")
        mf(D[1], A0, RB[4:8], 0)
        mf(D[2], A1, RB[0:4], 0)
        mf(D[3], A1, RB[4:8], 0)
        B0, B1 = W[0:4], W[4:8]
        twiddle(B0, D[0], D[1], RT[0:4])
        E0, E1, EX = W[32:36], W[36:40], W[40:44]
        mf(E0, RA2, B0, 0)
        mf(EX, RA2X, B0, 0)
        twiddle(B1, D[2], D[3], RT[4:8])
        mf(E1, RA2, B1, 0)
        a(f"v_cndmask_b32_e64 {E0[0]}, {E0[0]}, {EX[0]}, {sL0}")
        pk(t[0], E0[0], E0[1]); pk(t[1], E0[2], E0[3])
        a(f"ds_write_b32 {aRw}, {t[0]} offset:{L_RA}")
        a(f"ds_write_b32 {aRw}, {t[1]} offset:{L_RA + 8*520}")
        pk(t[2], E1[0], E1[1]); pk(t[3], E1[2], E1[3])
        a(f"ds_write_b32 {aRw}, {t[2]} offset:{L_RA + 64}")
        a(f"ds_write_b32 {aRw}, {t[3]} offset:{L_RA + 8*520 + 64}")
        if first:
            lab = L("nf")
            a(f"s_cmp_lg_u32 {sJ}, 7"); a(f"s_cbranch_scc1 {lab}")
            wait_flag()
            a.label(lab)
            a("s_waitcnt vmcnt(0)")
        a(f"s_mov_b32 {sOff}, {base}")
        a("s_waitcnt lgkmcnt(0)")
        a("s_barrier")
        for x in range(4):
            a(f"ds_read_b32 {t[4+x]}, {aRr} offset:{L_RA + 520*x}")
        a("s_waitcnt lgkmcnt(0)")
        a(f"buffer_store_dwordx4 {t[4:8]}, {gA}, {rWS}, {sOff} offen sc1")

    stats(False)
    sendA(t[1], WS_A1, True)
    stamp()

    read_rows(WR, 2048, 2048)
    a(f"v_and_b32 {t[3]}, 3, v0")
    a(f"v_lshrrev_b32 {t[4]}, 2, v0")
    a(f"v_lshlrev_b32 {t[5]}, 1, {t[3]}")
    a(f"v_xor_b32 {t[5]}, {t[4]}, {t[5]}")
    a(f"v_mul_u32_u24 {aCIw}, {PL}, {t[3]}")
    a(f"v_lshl_add_u32 {aCIw}, {t[5]}, 4, {aCIw}")
    a(f"v_and_b32 {t[6]}, 1, {vG}")
    a(f"v_lshrrev_b32 {t[7]}, 1, {vG}")
    a(f"v_lshlrev_b32 {t[8]}, 1, {t[6]}")
    a(f"v_xor_b32 {t[9]}, {vM}, {t[8]}")
    a(f"v_lshl_add_u32 {t[9]}, {t[7]}, 5, {t[9]}")
    a(f"v_mul_u32_u24 {t[10]}, {PL}, {t[6]}")
    a(f"v_lshl_add_u32 {aC0}, {t[9]}, 4, {t[10]}")
    a(f"v_xor_b32 {aC1}, 64, {aC0}")
    a(f"v_add_u32 {aC1}, {2*PL}, {aC1}")
    a(f"v_and_b32 {t[11]}, 47, {vLane}")
    a(f"v_cmp_eq_u32 vcc, 0, {t[11]}")
    a(f"v_add_u32 {t[11]}, 2048, {aC0}")
    a(f"v_add_u32 {t[12]}, 2048, {aC1}")
    a(f"v_mov_b32 {t[13]}, {140*16}")
    a(f"v_cndmask_b32 {aCx0}, {t[13]}, {t[11]}, vcc")
    a(f"v_cndmask_b32 {aCx1}, {t[13]}, {t[12]}, vcc")
    for i in range(4): a(f"v_mov_b32 {t[16+i]}, 0")
    a(f"ds_write_b128 {t[13]}, {t[16:20]} offset:{L_CI}")
    a(f"v_mov_b32 {t[13]}, {L_KMAX}")
    a(f"ds_write_b64 {t[13]}, {t[16:18]}")
    a(f"s_lshl_b32 {sT[2]}, {sJ}, 8")
    a(f"v_lshlrev_b32 {aCOw}, 10, {vG}")
    a(f"v_lshl_add_u32 {aCOw}, {vM}, 4, {aCOw}")
    a(f"v_add_u32 {aCOw}, {sT[2]}, {aCOw}")
    a(f"v_sub_u32 {t[5]}, 256, {t[4]}")
    a(f"v_and_b32 {t[5]}, 255, {t[5]}")
    a(f"v_cmp_lt_u32 vcc, 1, {t[3]}")
    a(f"v_and_b32 {t[6]}, 1, {t[3]}")
    a(f"v_cndmask_b32 {t[5]}, {t[4]}, {t[5]}, vcc")
    a(f"v_mul_u32_u24 {aCOr}, {PL2}, {t[6]}")
    a(f"v_lshl_add_u32 {aCOr}, {t[5]}, 4, {aCOr}")
    a("s_waitcnt lgkmcnt(0)")
    a(f"v_add_f32 {t[0]}, {WR[0]}, {WR[2]}")
    for i in range(2, 8): a(f"v_add_f32 {t[0]}, {t[0]}, {WR[2*i]}")
    reduce5([t[0]])
    a(f"v_add_f32_dpp {t[0]}, {t[0]}, {t[0]} row_bcast:31 row_mask:0xc bank_mask:0xf")
    a(f"v_readlane_b32 {sSW}, {t[0]}, 63")
    lab = L("noc")
    a(f"s_cmp_ge_u32 {sJ}, 4"); a(f"s_cbranch_scc1 {lab}")
    a(f"s_lshl_b32 {sT[2]}, {sJ}, 4")
    a(f"v_add_u32 {t[19]}, {sT[2]}, {vM}")
    a(f"v_cvt_f32_u32 {t[19]}, {t[19]}")
    a(f"v_and_b32 {t[16]}, 1, {vG}")
    a(f"v_lshrrev_b32 {t[17]}, 1, {vG}")
    a(f"v_lshl_add_u32 {t[16]}, {t[16]}, 5, {t[17]}")
    a(f"v_cvt_f32_u32 {t[16]}, {t[16]}")
    a(f"v_mul_f32 {t[21]}, {t[16]}, {t[19]}")
    a(f"v_mul_f32 {t[21]}, {f32(1/64)}, {t[21]}")
    for k in range(3):
        for x in range(4): fmamk(t[x], t[19], (2 * k + 8 * x) / 64, t[21])
        for x in range(4): cs(t[4 + x], t[8 + x], t[x])
        for x in range(4):
            pk(CB[8*k + x], t[4 + x], t[8 + x])
            pk(CB[8*k + 4 + x], f"-{t[8+x]}", t[4 + x])
    a(f"v_mul_f32 {t[21]}, {t[19]}, {vFG}")
    a(f"v_mul_f32 {t[21]}, {f32(4/2048)}, {t[21]}")
    quad_cs(CT[0:4], t[19], 1 / 2048, t[21])
    fmamk(t[21], t[19], 16 / 2048, t[21])
    quad_cs(CT[4:8], t[19], 1 / 2048, t[21])
    def a2_family(dst, k2, scale):
        a(f"v_cvt_f32_u32 {t[19]}, {k2}")
        a(f"v_and_b32 {t[18]}, 1, {k2}")
        a(f"v_mul_u32_u24 {t[18]}, 0x8000, {t[18]}")
        a(f"v_lshl_or_b32 {t[18]}, {t[18]}, 16, {t[18]}")
        a(f"v_mul_f32 {t[21]}, {t[19]}, {vFG}")
        a(f"v_mul_f32 {t[21]}, {f32(4/32)}, {t[21]}")
        quad_cs(dst[0:4], t[19], 1 / 32, t[21], scale)
        for x in range(4): a(f"v_xor_b32 {dst[4+x]}, {t[18]}, {dst[x]}")
        for x in range(8): a(f"v_xor_b32 {dst[8+x]}, 0x80000000, {dst[x]}")
    a(f"v_lshrrev_b32 {t[16]}, 2, {vM}")
    a(f"v_and_b32 {t[17]}, 3, {vM}")
    a(f"v_lshl_add_u32 {t[16]}, {t[17]}, 2, {t[16]}")
    a2_family(CA2, t[16], 1 / 32)
    a.label(lab)

    def cphase(abase, ybase):
        skip = L("cskip")
        a(f"s_cmp_eq_u32 s2, 128"); a(f"s_cbranch_scc1 {skip}")
        a(f"s_mul_i32 {sOff}, s2, {AIN}")
        a(f"s_add_u32 {sOff}, {sOff}, {abase}")
        poll([f"buffer_load_dwordx4 {t[4:8]}, {vT16}, {rWS}, {sOff} offen sc1"], [t[i] for i in range(4, 8)], o["sleepA"])
        a(f"ds_write_b128 {aCIw}, {t[4:8]} offset:{L_CI}")
        lab = L("nox")
        a(f"s_cmp_lg_u32 {sJ}, 0"); a(f"s_cbranch_scc1 {lab}")
        a(f"s_add_u32 {sOff}, {sOff}, 8192")
        a(f"s_mov_b64 exec, 0xf")
        poll([f"buffer_load_dwordx4 {t[8:12]}, {vT16}, {rWS}, {sOff} offen sc1"], [t[i] for i in range(8, 12)])
        a(f"ds_write_b128 {aCIw}, {t[8:12]} offset:{L_CI + 2048}")
        a(f"s_mov_b64 exec, -1")
        a.label(lab)
        a("s_waitcnt lgkmcnt(0)")
        a("s_barrier")
        stamp()
        lab = L("noc2")
        a(f"s_cmp_ge_u32 {sJ}, 4"); a(f"s_cbranch_scc1 {lab}")
        F = [[W[20*u + 4*i: 20*u + 4*i + 4] for i in range(5)] for u in range(2)]
        ac, ax = [aC0, aC1], [aCx0, aCx1]
        for u in range(2):
            for Tm in range(2):
                for k in range(2):
                    a(f"ds_read_b128 {F[u][2*Tm+k]}, {ac[u]} offset:{L_CI + 256*Tm + 1024*k}")
                if Tm == 0: a(f"ds_read_b128 {F[u][4]}, {ax[u]} offset:{L_CI}")
        D = [[W[40 + 16*u + 4*i: 44 + 16*u + 4*i] for i in range(4)] for u in range(2)]
        def s1(u, Tm):
            for k in range(2):
                for p in range(2):
                    mf(D[u][2*Tm+p], F[u][2*Tm+k], CB[8*k + 4*p: 8*k + 4*p + 4], 0 if k == 0 else D[u][2*Tm+p])
            if Tm == 0:
                for p in range(2):
                    mf(D[u][p], F[u][4], CB[16 + 4*p: 20 + 4*p], D[u][p])
        a("s_waitcnt lgkmcnt(7)"); s1(0, 0)
        a("s_waitcnt lgkmcnt(5)"); s1(0, 1)
        a("s_waitcnt lgkmcnt(2)"); s1(1, 0)
        Bf = [[W[0:4], W[4:8]], [W[8:12], W[12:16]]]
        twiddle(Bf[0][0], D[0][0], D[0][1], CT[0:4])
        a("s_waitcnt lgkmcnt(0)"); s1(1, 1)
        twiddle(Bf[0][1], D[0][2], D[0][3], CT[4:8])
        Y = [[W[72:76], W[76:80]], [W[40:44], W[44:48]]]
        def s2f(u):
            for Tm in range(2):
                for Mt in range(2):
                    mf(Y[u][Mt], CA2[8*Mt + 4*Tm: 8*Mt + 4*Tm + 4], Bf[u][Tm], 0 if Tm == 0 else Y[u][Mt])
        s2f(0)
        twiddle(Bf[1][0], D[1][0], D[1][1], CT[0:4])
        twiddle(Bf[1][1], D[1][2], D[1][3], CT[4:8])
        s2f(1)
        for Mt in range(2):
            for r in range(4): pk(t[4*Mt + r], Y[0][Mt][r], Y[1][Mt][r])
            a(f"ds_write_b128 {aCOw}, {t[4*Mt:4*Mt+4]} offset:{L_CO + PL2*Mt}")
        a.label(lab)
        a(f"s_mov_b32 {sOff}, {ybase}")
        a("s_waitcnt lgkmcnt(0)")
        a("s_barrier")
        a(f"ds_read_b128 {t[4:8]}, {aCOr} offset:{L_CO}")
        lab = L("nox2")
        a(f"s_cmp_lg_u32 {sJ}, 0"); a(f"s_cbranch_scc1 {lab}")
        a(f"s_mov_b64 exec, 0xf")
        a(f"ds_read_b128 {t[8:12]}, {aCOr} offset:{L_CO + 2048}")
        a(f"s_add_u32 {sOff2}, {sOff}, {128*8192}")
        a("s_waitcnt lgkmcnt(0)")
        a(f"buffer_store_dwordx4 {t[8:12]}, {gY}, {rWS}, {sOff2} offen sc1")
        a(f"s_mov_b64 exec, -1")
        a.label(lab)
        a("s_waitcnt lgkmcnt(0)")
        a(f"buffer_store_dwordx4 {t[4:8]}, {gY}, {rWS}, {sOff} offen sc1")
        a.label(skip)
        stamp()

    def recvY(ybase):
        a(f"s_lshl_b32 {sOff}, s2, 13")
        a(f"s_add_u32 {sOff}, {sOff}, {ybase}")
        poll([f"buffer_load_dwordx4 {t[4:8]}, {vT16}, {rWS}, {sOff} offen sc1"], [t[i] for i in range(4, 8)], o["sleepY"])
        for x in range(4):
            a(f"ds_write_b32 {aRr}, {t[4+x]} offset:{L_RY + 520*x}")
        a("s_waitcnt lgkmcnt(0)")
        a("s_barrier")
        stamp()
        a(f"ds_read_b32 {t[8]}, {aRw} offset:{L_RY}")
        a(f"ds_read_b32 {t[9]}, {aRw} offset:{L_RY + 64}")
        a(f"ds_read_b32 {t[10]}, {aYm0}")
        a(f"ds_read_b32 {t[11]}, {aYm1}")
        a("s_waitcnt lgkmcnt(0)")
        a(f"v_and_b32 {t[8]}, {vMask0}, {t[8]}")
        a(f"v_alignbit_b32 {t[10]}, {t[10]}, {t[10]}, {vRot0}")
        for q in (1, 0, 3, 2):
            for b1 in range(2):
                hi = b1 if q < 2 else 1 - b1
                for r in range(2):
                    x = X[2*(2*q + b1) + r]
                    a(f"v_fma_mix_f32 {x}, {t[8+q]}, {s32}, {x} op_sel:[{hi},0,0] op_sel_hi:[1,0,0]")

    def nat_write(src, rowb):
        for i in range(8):
            if not rowb: a(f"ds_write_b16 {aXa}, {src[i]} offset:{soff(i)}")
            elif i == 0: a(f"ds_write_b16_d16_hi {aXb0}, {src[0]} offset:1024")
            else: a(f"ds_write_b16_d16_hi {aXb}, {src[i]} offset:{1024 + 800 - soff(i)}")

    def route(layer, kbase, zbase):
        mean, rstd, var, ve = t[0], t[1], t[2], t[3]
        a(f"v_fma_f32 {t[4]}, -{mean}, {sSW}, {t[4]}")
        a(f"v_mul_f32 {vKey[2]}, {t[4]}, {rstd}")
        a(f"v_ashrrev_i32 {t[5]}, 31, {vKey[2]}")
        a(f"v_or_b32 {t[5]}, 0x80000000, {t[5]}")
        a(f"v_xor_b32 {t[5]}, {t[5]}, {vKey[2]}")
        a(f"v_and_b32 {t[5]}, 0xfffff800, {t[5]}")
        a(f"v_or_b32 {vKey[3]}, {t[5]}, {vRowc}")
        a(f"v_mov_b32 {t[5]}, {L_KMAX + 4*layer}")
        a(f"s_mov_b32 exec_lo, 0x10000"); a(f"s_mov_b32 exec_hi, 0x10000")
        a(f"ds_max_u32 {t[5]}, {vKey[3]}")
        a(f"s_mov_b64 exec, -1")
        a(f"v_add_f32 {t[8]}, 1.0, {rstd}")
        a(f"v_mul_f32 {t[9]}, {mean}, {rstd}")
        a(f"v_mul_f32 {t[7]}, {t[8]}, {t[8]}")
        a(f"v_fmaak_f32 {t[7]}, {t[7]}, {var}, {f32(EPS)}")
        a(f"v_rsq_f32 {t[7]}, {t[7]}")
        a(f"v_mul_f32 {t[10]}, {ve}, {rstd}")
        a(f"v_mul_f32 {t[7]}, {t[7]}, {t[8]}")
        a(f"v_add_f32 {vKey[0]}, 1.0, {t[10]}")
        a(f"v_mul_f32 {vKey[1]}, {t[7]}, {t[10]}")
        a("s_waitcnt lgkmcnt(0)")
        a("s_barrier")
        a(f"ds_read_b32 {t[6]}, {t[5]}")
        a(f"v_readlane_b32 {sQ[0]}, {rstd}, 16")
        a(f"v_readlane_b32 {sQ[1]}, {rstd}, 48")
        a(f"v_readlane_b32 {sQ2[0]}, {t[9]}, 16")
        a(f"v_readlane_b32 {sQ2[1]}, {t[9]}, 48")
        a(f"s_lshl_b32 {sOff}, s2, 7")
        a(f"s_add_u32 {sOff}, {sOff}, {kbase}")
        a(f"s_mul_i32 {sOff2}, s2, {ZSTR}")
        a(f"s_add_u32 {sOff2}, {sOff2}, {zbase}")
        a(f"v_mov_b32 {t[10]}, {sQ2[0]}")
        a(f"v_mov_b32 {t[11]}, {sQ2[1]}")
        a(f"v_mov_b32 {t[5]}, 0")
        a("s_waitcnt lgkmcnt(0)")
        a(f"v_cmp_eq_u32 vcc, {t[6]}, {vKey[3]}")
        a(f"s_and_b32 {sM[0]}, vcc_lo, 0x10000")
        a(f"s_and_b32 {sM[1]}, vcc_hi, 0x10000")
        a(f"s_cmp_lg_u32 {sM[0]}, 0")
        a(f"s_cselect_b32 {sM[1]}, 0, {sM[1]}")
        n1 = L("nokey")
        a(f"s_or_b32 {sT[0]}, {sM[0]}, {sM[1]}")
        a(f"s_cbranch_scc0 {n1}")
        a(f"s_mov_b64 exec, {sM}")
        a(f"buffer_store_dword {vKey[3]}, {t[5]}, {rWS}, {sOff} offen sc1")
        a(f"buffer_store_dwordx4 {vKey}, {t[5]}, {rWS}, {sOff2} offen offset:1024 sc1")
        a(f"s_mov_b64 exec, -1")
        a.label(n1)
        Z = W[0:16]
        for i in range(8):
            a(f"v_pk_fma_f32 {Z[2*i:2*i+2]}, {U[2*i:2*i+2]}, {sQ}, {t[10:12]} neg_lo:[0,0,1] neg_hi:[0,0,1]")
        n2, n3, n4 = L("noz"), L("zb"), L("zj")
        a(f"s_cmp_eq_u32 {sT[0]}, 0")
        a(f"s_cbranch_scc1 {n2}")
        P = W[16:24]
        for i in range(8): a(f"v_cvt_pk_bf16_f32 {P[i]}, {Z[2*i]}, {Z[2*i+1]}")
        a(f"s_cmp_eq_u32 {sM[0]}, 0")
        a(f"s_cbranch_scc1 {n3}")
        nat_write(P, False)
        a("s_waitcnt lgkmcnt(0)")
        a(f"ds_read_b128 {W[24:28]}, {aXn}")
        a(f"s_branch {n4}")
        a.label(n3)
        nat_write(P, True)
        a("s_waitcnt lgkmcnt(0)")
        a(f"ds_read_b128 {W[24:28]}, {aXn} offset:1024")
        a.label(n4)
        a("s_waitcnt lgkmcnt(0)")
        a(f"buffer_store_dwordx4 {W[24:28]}, {vL16}, {rWS}, {sOff2} offen sc1")
        a.label(n2)
        for i in range(8):
            a(f"v_pk_add_f32 {X[2*i:2*i+2]}, {X[2*i:2*i+2]}, {Z[2*i:2*i+2]}")

    def preduce(pbase):
        a(f"v_lshrrev_b32 {t[0]}, 3, {vLane}")
        a(f"v_and_b32 {t[1]}, 7, {vLane}")
        a(f"v_lshlrev_b32 {t[2]}, 10, {t[0]}")
        a(f"v_lshl_add_u32 {t[2]}, {t[1]}, 4, {t[2]}")
        a(f"v_add_u32 {t[3]}, 8192, {t[2]}")
        a(f"v_add_u32 {t[20]}, 16384, {t[2]}")
        a(f"v_add_u32 {t[21]}, 24576, {t[2]}")
        a(f"v_cmp_lt_u32 vcc, 31, {vLane}")
        a(f"v_mov_b32 {t[22]}, {WS_SIZE}")
        a(f"v_cndmask_b32 {t[21]}, {t[21]}, {t[22]}, vcc")
        a(f"s_lshl_b32 {sOff}, {sJ}, 7")
        a(f"s_add_u32 {sOff}, {sOff}, {pbase}")
        a(f"v_and_b32 {t[22]}, 3, {t[0]}")
        a(f"v_lshlrev_b32 {t[22]}, 4, {t[22]}")
        a(f"v_lshl_add_u32 {t[22]}, {t[1]}, 1, {t[22]}")
        a(f"v_lshrrev_b32 {t[0]}, 2, {t[0]}")
        a(f"v_add_u32 {t[22]}, {t[22]}, {t[0]}")
        a(f"s_lshl_b32 {sT[0]}, {sJ}, 8")
        a(f"v_lshl_add_u32 {t[22]}, {t[22]}, 2, {sT[0]}")
        a(f"s_mov_b32 {sM[0]}, 0xff00ff00"); a(f"s_mov_b32 {sM[1]}, 0xff00ff00")
        ad = [t[2], t[3], t[20], t[21]]
        poll([f"buffer_load_dwordx4 {t[4+4*i:8+4*i]}, {ad[i]}, {rWS}, {sOff} offen sc1" for i in range(4)],
             [t[i] for i in range(4, 20)], o["sleepP"])
        stamp()
        acc = W[64:72]; tmp = W[72:80]
        for xx in range(4):
            a(f"v_lshlrev_b32 {acc[2*xx]}, 16, {t[4+xx]}")
            a(f"v_and_b32 {acc[2*xx+1]}, 0xffff0000, {t[4+xx]}")
        for i in range(1, 4):
            for xx in range(4):
                a(f"v_lshlrev_b32 {tmp[2*xx]}, 16, {t[4+4*i+xx]}")
                a(f"v_and_b32 {tmp[2*xx+1]}, 0xffff0000, {t[4+4*i+xx]}")
            for xx in range(4):
                a(f"v_pk_add_f32 {acc[2*xx:2*xx+2]}, {acc[2*xx:2*xx+2]}, {tmp[2*xx:2*xx+2]}")
        for x in range(4): a(f"v_permlane32_swap_b32 {acc[x]}, {acc[x+4]}")
        a(f"v_pk_add_f32 {acc[0:2]}, {acc[0:2]}, {acc[4:6]}")
        a(f"v_pk_add_f32 {acc[2:4]}, {acc[2:4]}, {acc[6:8]}")
        for x in range(2): a(f"v_permlane16_swap_b32 {acc[x]}, {acc[x+2]}")
        a(f"v_pk_add_f32 {acc[0:2]}, {acc[0:2]}, {acc[2:4]}")
        for x in range(2): a(f"v_add_f32_dpp {acc[x]}, {acc[x]}, {acc[x]} row_ror:8 row_mask:0xf bank_mask:0xf")
        a(f"v_cndmask_b32_e64 {acc[0]}, {acc[0]}, {acc[1]}, {sM}")
        a(f"ds_write_b32 {t[22]}, {acc[0]} offset:{L_YV}")
        a("s_waitcnt lgkmcnt(0)")
        a("s_barrier")

    def read_y(dst):
        a(f"v_lshlrev_b32 {t[0]}, 7, {vG}")
        a(f"v_lshl_add_u32 {t[0]}, {vM}, 2, {t[0]}")
        for i in range(8): a(f"ds_read_b32 {dst[i]}, {t[0]} offset:{L_YV + 2*soff(i)}")

    def add_y_owner(Yr, have_y):
        n1, n2 = L("nya"), L("nyb")
        a(f"s_cmp_lg_u32 {sA}, {sRow}"); a(f"s_cbranch_scc1 {n1}")
        if not have_y:
            read_y(Yr); a("s_waitcnt lgkmcnt(0)")
        for i in range(8): a(f"v_add_f32 {X[2*i]}, {X[2*i]}, {Yr[i]}")
        a.label(n1)
        a(f"s_cmp_lg_u32 {sB}, {sRow}"); a(f"s_cbranch_scc1 {n2}")
        a(f"v_lshlrev_b32 {t[0]}, 7, {vG}")
        a(f"v_lshl_add_u32 {t[0]}, {vM}, 2, {t[0]}")
        a(f"v_sub_u32 {t[0]}, 2048, {t[0]}")
        a(f"v_and_b32 {t[1]}, 2047, {t[0]}")
        a(f"ds_read_b32 {t[4]}, {t[1]} offset:{L_YV}")
        for i in range(1, 8): a(f"ds_read_b32 {t[4+i]}, {t[0]} offset:{L_YV - 2*soff(i)}")
        a("s_waitcnt lgkmcnt(0)")
        for i in range(8): a(f"v_add_f32 {X[2*i+1]}, {X[2*i+1]}, {t[4+i]}")
        a.label(n2)

    cphase(WS_A1, WS_Y1)
    recvY(WS_Y1)
    stats(True)
    route(0, WS_K1, WS_Z1)
    stamp()
    sendA(t[7], WS_A2, False)
    stamp()
    a(f"v_mul_f32 {t[21]}, {vFM}, {vFG}")
    a(f"v_mul_f32 {t[21]}, {f32(1/16)}, {t[21]}")
    for x in range(4): fmamk(t[x], vFM, (4 * (x & 1) + 8 * (x >> 1)) / 16, t[21])
    for x in range(4): cs(t[4 + x], t[8 + x], t[x], negs=True)
    pk(DB[0], t[4], t[5]); pk(DB[1], t[6], t[7]); pk(DB[2], t[8], t[9]); pk(DB[3], t[10], t[11])
    a(f"v_lshrrev_b32 {t[16]}, 1, {vM}")
    a(f"v_and_b32 {t[17]}, 1, {vM}")
    a(f"v_lshl_add_u32 {t[16]}, {t[17]}, 3, {t[16]}")
    a2_family(DA2, t[16], None)

    cphase(WS_A2, WS_Y2)
    lab = L("nk")
    a(f"s_cmp_lg_u32 {sJ}, 7"); a(f"s_cbranch_scc1 {lab}")
    a(f"s_mov_b32 {sOff}, {WS_K1}"); a(f"s_mov_b32 {sOff2}, {WS_Z1}")
    keypoll(sOff, sOff2)
    a.label(lab)
    recvY(WS_Y2)
    ZS = W[48:56]; ZK = W[56:64]
    a(f"v_lshlrev_b32 {t[0]}, 6, {vG}")
    a(f"v_lshl_add_u32 {t[0]}, {vM}, 1, {t[0]}")
    a(f"v_add_u32 {t[0]}, {L_Z}, {t[0]}")
    a(f"v_mov_b32 {t[1]}, {L_Z}")
    a(f"ds_read_b128 {t[4:8]}, {t[1]} offset:1024")
    for i in range(8): a(f"ds_read_u16_d16_hi {ZS[i]}, {t[0]} offset:{soff(i)}")
    a("s_waitcnt lgkmcnt(0)")
    a(f"v_readfirstlane_b32 {sKey}, {t[7]}")
    for i in range(8): a(f"v_mul_f32 {ZK[i]}, {ZS[i]}, {t[5]}")
    for i in range(8): a(f"v_mul_f32 {ZS[i]}, {ZS[i]}, {t[4]}")
    key2sig()
    a(f"s_mul_i32 {sT[0]}, {sA}, {sRow}")
    a(f"s_and_b32 {sT[0]}, {sT[0]}, 2047")
    a(f"v_cvt_f32_u32 {t[20]}, {sT[0]}")
    a(f"v_mul_f32 {t[20]}, {f32(1/2048)}, {t[20]}")
    a(f"v_mul_f32 {t[21]}, {vFM}, {vFG}")
    a(f"v_fmamk_f32 {t[21]}, {t[21]}, {f32(4/512)}, {t[20]}")
    quad_cs(DT[0:4], vFM, 1 / 512, t[21])
    fmamk(t[21], vFM, 16 / 512, t[21])
    quad_cs(DT[4:8], vFM, 1 / 512, t[21])

    preduce(WS_P1)
    Yr = W[0:8]; Vv = W[8:16]
    read_y(Yr)
    a("s_waitcnt lgkmcnt(0)")
    for i in range(4): a(f"v_pk_add_f32 {Vv[2*i:2*i+2]}, {Yr[2*i:2*i+2]}, {ZS[2*i:2*i+2]}")
    a(f"v_readfirstlane_b32 {sT[0]}, {Vv[0]}")
    for i in range(8): a(f"v_subrev_f32 {Vv[i]}, {sT[0]}, {Vv[i]}")
    S1, S2 = t[0:2], t[2:4]
    a(f"v_pk_mul_f32 {S2}, {Vv[0:2]}, {Vv[0:2]}")
    for i in range(1, 4):
        u = Vv[2*i:2*i+2]
        a(f"v_pk_add_f32 {S1}, {Vv[0:2] if i == 1 else S1}, {u}")
        a(f"v_pk_fma_f32 {S2}, {u}, {u}, {S2}")
    a(f"v_add_f32 {t[0]}, {t[0]}, {t[1]}")
    a(f"v_add_f32 {t[2]}, {t[2]}, {t[3]}")
    a(f"v_permlane32_swap_b32 {t[0]}, {t[2]}")
    a(f"v_add_f32 {t[0]}, {t[0]}, {t[2]}")
    reduce5([t[0]])
    a(f"v_mul_f32 {t[0]}, {sI512}, {t[0]}")
    a(f"v_readlane_b32 {sT[0]}, {t[0]}, 16")
    a(f"v_readlane_b32 {sT[1]}, {t[0]}, 48")
    a(f"v_mov_b32 {t[0]}, {sT[0]}")
    a(f"v_fma_f32 {t[1]}, -{t[0]}, {t[0]}, {sT[1]}")
    a(f"v_max_f32 {t[1]}, 0, {t[1]}")
    a(f"v_add_f32 {t[1]}, {f32(EPS)}, {t[1]}")
    a(f"v_rsq_f32 {t[1]}, {t[1]}")
    for i in range(8): a(f"v_subrev_f32 {Vv[i]}, {sT[0]}, {Vv[i]}")
    for i in range(8): a(f"v_fma_f32 {Vv[i]}, {Vv[i]}, {t[1]}, -{ZK[i]}")
    A = W[16:20]
    for b0 in range(2):
        for b2 in range(2):
            q = b0 + 2 * b2
            pk(A[2*b0 + b2], Vv[2*q], Vv[2*q+1])
    D = [W[20:24], W[24:28], W[28:32], W[32:36]]
    for b0 in range(2):
        for p in range(2):
            a(f"v_mfma_f32_16x16x16_f16 {D[2*b0+p]}, {A[2*b0:2*b0+2]}, {DB[2*p:2*p+2]}, 0")
    add_y_owner(Yr, True)
    Bf = [W[36:40], W[40:44]]
    E = [W[8:12], W[12:16]]
    twiddle(Bf[0], D[0], D[1], DT[0:4])
    for Mt in range(2): mf(E[Mt], DA2[8*Mt: 8*Mt+4], Bf[0], 0)
    twiddle(Bf[1], D[2], D[3], DT[4:8])
    for Mt in range(2): mf(E[Mt], DA2[8*Mt+4: 8*Mt+8], Bf[1], E[Mt])
    for i in range(8):
        e = E[i >> 2][i & 3]
        a(f"v_add_f32 {X[2*i]}, {X[2*i]}, {e}")
        a(f"v_add_f32 {X[2*i+1]}, {X[2*i+1]}, {e}")
    stats(True)
    route(1, WS_K2, WS_Z2)
    stamp()
    lab = L("nk2")
    a(f"s_cmp_lg_u32 {sJ}, 7"); a(f"s_cbranch_scc1 {lab}")
    a(f"s_mov_b32 {sOff}, {WS_K2}")
    keypoll(sOff, None, o["sleepK"])
    a.label(lab)
    a("s_waitcnt lgkmcnt(0)")
    a("s_barrier")
    a(f"v_mov_b32 {t[1]}, {L_Z}")
    a(f"ds_read_b32 {t[7]}, {t[1]} offset:{1024+12}")
    a("s_waitcnt lgkmcnt(0)")
    a(f"v_readfirstlane_b32 {sKey}, {t[7]}")
    key2sig()
    lab = L("nfin")
    a(f"s_cmp_lg_u32 {sSig}, s2"); a(f"s_cbranch_scc1 {lab}")
    preduce(WS_P2)
    add_y_owner(W[0:8], False)
    a.label(lab)
    P = W[16:24]
    for i in range(8): a(f"v_cvt_pk_bf16_f32 {P[i]}, {X[2*i]}, {X[2*i+1]}")
    nat_write(P, False); nat_write(P, True)
    a(f"s_lshl_b32 {sT[0]}, {sA}, 10")
    a(f"s_lshl_b32 {sT[1]}, {sB}, 10")
    a("s_waitcnt lgkmcnt(0)")
    a(f"ds_read_b128 {W[0:4]}, {aXn}")
    a(f"ds_read_b128 {W[4:8]}, {aXn} offset:1024")
    a("s_waitcnt lgkmcnt(1)")
    a(f"buffer_store_dwordx4 {W[0:4]}, {vL16}, {rOUT}, {sT[0]} offen")
    a("s_waitcnt lgkmcnt(0)")
    a(f"buffer_store_dwordx4 {W[4:8]}, {vL16}, {rOUT}, {sT[1]} offen")
    if prof:
        a("s_waitcnt vmcnt(0)")
        nts[0] = 15
        stamp()
        dump_stamps(16)
    a("s_endpgm")

    a.hist = []
    a.label("L_notR")
    a(f"s_cmp_ge_u32 s2, {NR + NF}")
    a("s_cbranch_scc1 L_helper")
    a.vn = vbase
    nts[0] = 1
    LG = a.v("LG", 32); LU = a.v("LU", 32); LD = a.v("LD", 32)
    BU = a.v("BU", 64); BD = a.v("BD", 32)
    aZ = a.v("aZ"); aH = a.v("aH"); aHr = a.v("aHr"); gP = a.v("gP")
    vmaxF = a.vn
    sF = sA
    a(f"s_sub_u32 {sF}, s2, {NR}")
    srd(rX, sPW[2:4], 512 * 3584)
    srd(rOUT, sPW[4:6], 512 * 3584)
    srd(rAUX, sPW[6:8], 1792 * 1024)
    a(f"v_lshrrev_b32 {t[0]}, 3, v0")
    a(f"v_and_b32 {t[1]}, 7, v0")
    a(f"v_mul_u32_u24 {t[2]}, 3584, {t[0]}")
    a(f"v_lshl_add_u32 {t[2]}, {t[1]}, 4, {t[2]}")
    a(f"s_lshl_b32 {sOff}, {sF}, 7")
    for i in range(8):
        a(f"buffer_load_dwordx4 {LG[4*i:4*i+4]}, {t[2]}, {rX}, {sOff} offen")
        a(f"buffer_load_dwordx4 {LU[4*i:4*i+4]}, {t[2]}, {rOUT}, {sOff} offen")
        if i < 7: a(f"s_add_u32 {sOff}, {sOff}, {64*3584}")
    a(f"s_lshl_b32 {sOff}, {sF}, 16")
    for i in range(8):
        a(f"buffer_load_dwordx4 {LD[4*i:4*i+4]}, {vT16}, {rAUX}, {sOff} offen")
        if i < 7: a(f"s_add_u32 {sOff}, {sOff}, 8192")
    a(f"v_mul_u32_u24 {t[3]}, 144, {t[0]}")
    a(f"v_lshl_add_u32 {t[3]}, {t[1]}, 4, {t[3]}")
    a(f"v_add_u32 {t[4]}, {LF_U}, {t[3]}")
    for i in range(8):
        a(f"s_waitcnt vmcnt({22 - 2*i})")
        a(f"ds_write_b128 {t[3]}, {LG[4*i:4*i+4]} offset:{9216*i}")
        a(f"ds_write_b128 {t[4]}, {LU[4*i:4*i+4]} offset:{9216*i}")
    a(f"v_lshrrev_b32 {t[5]}, 2, {vM}")
    a(f"v_lshl_add_u32 {t[5]}, {vG}, 3, {t[5]}")
    a(f"v_and_b32 {t[6]}, 1, {vM}")
    a(f"v_bfe_u32 {t[7]}, {vM}, 1, 1")
    a(f"v_mul_u32_u24 {t[8]}, 144, {t[5]}")
    a(f"v_lshl_add_u32 {t[8]}, {t[6]}, 3, {t[8]}")
    a(f"v_mul_u32_u24 {t[7]}, {LF_U}, {t[7]}")
    a(f"s_lshl_b32 {sT[0]}, {sJ}, 4")
    a(f"v_add3_u32 {t[8]}, {t[8]}, {t[7]}, {sT[0]}")
    a(f"v_add_u32 {t[9]}, {8*32*144}, {t[8]}")
    a("s_waitcnt lgkmcnt(0)")
    a("s_barrier")
    for k in range(16):
        for h in range(2):
            a(f"ds_read_b64_tr_b16 {BU[4*k+2*h:4*k+2*h+2]}, {t[8] if k < 8 else t[9]} offset:{((k&7)*32 + 4*h)*144}")
        if k % 4 == 3: a("s_waitcnt lgkmcnt(0)")
    a("s_barrier")
    a(f"s_mul_i32 {sT[0]}, {sJ}, {DSTR}")
    a(f"v_add_u32 {t[3]}, {sT[0]}, {vL16}")
    a("s_waitcnt vmcnt(0)")
    for i in range(8):
        a(f"ds_write_b128 {t[3]}, {LD[4*i:4*i+4]} offset:{8*DSTR*i}")
    a(f"v_mul_u32_u24 {t[8]}, {DSTR}, {t[5]}")
    a(f"v_and_b32 {t[6]}, 3, {vM}")
    a(f"v_lshl_add_u32 {t[8]}, {t[6]}, 3, {t[8]}")
    a(f"s_lshl_b32 {sT[0]}, {sJ}, 7")
    a(f"v_add_u32 {t[8]}, {sT[0]}, {t[8]}")
    a("s_waitcnt lgkmcnt(0)")
    a("s_barrier")
    for tau in range(4):
        for k in range(2):
            for h in range(2):
                b = 8*tau + 4*k + 2*h
                a(f"ds_read_b64_tr_b16 {BD[b:b+2]}, {t[8]} offset:{(32*k + 4*h)*DSTR + 32*tau}")
        if tau % 2 == 1: a("s_waitcnt lgkmcnt(0)")
    a(f"v_lshlrev_b32 {aZ}, 6, {vM}")
    a(f"v_lshl_add_u32 {aZ}, {vG}, 4, {aZ}")
    a(f"v_add_u32 {aZ}, {L_Z}, {aZ}")
    a(f"s_lshl_b32 {sT[0]}, {sJ}, 4")
    a(f"s_add_u32 {sT[0]}, {sT[0]}, {L_H}")
    a(f"v_lshl_add_u32 {aH}, {vLane}, 1, {sT[0]}")
    a(f"v_lshlrev_b32 {aHr}, 4, {vG}")
    a(f"v_add_u32 {aHr}, {L_H}, {aHr}")
    a(f"s_lshl_b32 {sT[0]}, {sF}, 10")
    a(f"s_lshl_b32 {sT[1]}, {sJ}, 7")
    a(f"s_add_u32 {sT[0]}, {sT[0]}, {sT[1]}")
    a(f"v_lshl_add_u32 {gP}, {vLane}, 3, {sT[0]}")
    MK = [sP, sQ, sQ2, sM]
    for gp in range(4):
        m = 0x000f000f << (4 * gp)
        a(f"s_mov_b32 {MK[gp][0]}, {m:#x}"); a(f"s_mov_b32 {MK[gp][1]}, {m:#x}")
    stamp()
    lab = L("nfl")
    a(f"s_cmp_lg_u32 {sJ}, 0"); a(f"s_cbranch_scc1 {lab}")
    wait_flag()
    a.label(lab)
    LOG2E = 1.4426950408889634
    for layer, (kb, zb, pb) in enumerate(((WS_K1, WS_Z1, WS_P1), (WS_K2, WS_Z2, WS_P2))):
        lab = L("nkf")
        a(f"s_cmp_lg_u32 {sJ}, 0"); a(f"s_cbranch_scc1 {lab}")
        a(f"s_mov_b32 {sOff}, {kb}"); a(f"s_mov_b32 {sOff2}, {zb}")
        keypoll(sOff, sOff2)
        a.label(lab)
        a(f"v_mov_b32 {t[0]}, {L_Z}")
        a("s_waitcnt lgkmcnt(0)")
        a("s_barrier")
        stamp()
        a(f"ds_read_b128 {t[4:8]}, {aZ}")
        a(f"ds_read_b32 {t[1]}, {t[0]} offset:{1024+8}")
        AM = LG[0:16]; D = LU[0:16]
        a("s_waitcnt lgkmcnt(1)")
        for gp in range(4):
            for x in range(4): a(f"v_cndmask_b32_e64 {AM[4*gp+x]}, 0, {t[4+x]}, {MK[gp]}")
            for r in range(4):
                k = 4*gp + r
                a(f"v_mfma_f32_16x16x32_bf16 {D[4*r:4*r+4]}, {AM[4*gp:4*gp+4]}, {BU[4*k:4*k+4]}, {0 if gp == 0 else D[4*r:4*r+4]}")
        a("s_waitcnt lgkmcnt(0)")
        a(f"v_mul_f32 {t[1]}, {f32(-LOG2E)}, {t[1]}")
        a(f"v_exp_f32 {t[1]}, {t[1]}")
        a(f"v_add_f32 {t[1]}, 1.0, {t[1]}")
        a(f"v_rcp_f32 {t[1]}, {t[1]}")
        a(f"v_add_f32 {t[2]}, {D[0]}, {D[5]}")
        a(f"v_add_f32 {t[3]}, {D[10]}, {D[15]}")
        a(f"v_add_f32 {t[2]}, {t[2]}, {t[3]}")
        a(f"v_mov_b32 {t[3]}, {t[2]}")
        a(f"v_permlane32_swap_b32 {t[2]}, {t[3]}")
        a(f"v_add_f32 {t[2]}, {t[2]}, {t[3]}")
        a(f"v_mov_b32 {t[3]}, {t[2]}")
        a(f"v_permlane16_swap_b32 {t[2]}, {t[3]}")
        a(f"v_add_f32 {t[2]}, {t[2]}, {t[3]}")
        a(f"v_mul_f32 {t[3]}, {f32(-LOG2E)}, {t[2]}")
        a(f"v_exp_f32 {t[3]}, {t[3]}")
        a(f"v_mul_f32_dpp {t[4]}, {t[2]}, {t[2]} row_ror:8 row_mask:0xf bank_mask:0xf")
        a(f"v_add_f32 {t[3]}, 1.0, {t[3]}")
        a(f"v_rcp_f32 {t[3]}, {t[3]}")
        a(f"v_mul_f32 {t[4]}, {t[4]}, {t[3]}")
        a(f"v_cvt_pk_bf16_f32 {t[4]}, {t[4]}, {t[4]}")
        a(f"s_mov_b64 exec, 0xff")
        a(f"ds_write_b16 {aH}, {t[4]}")
        a(f"s_mov_b64 exec, -1")
        a("s_waitcnt lgkmcnt(0)")
        a("s_barrier")
        a(f"ds_read_b128 {t[4:8]}, {aHr}")
        a(f"ds_read_b128 {t[8:12]}, {aHr} offset:64")
        a(f"s_mov_b32 {sOff}, {pb}")
        a("s_waitcnt lgkmcnt(1)")
        for tau in range(4):
            a(f"v_mfma_f32_16x16x32_bf16 {D[4*tau:4*tau+4]}, {t[4:8]}, {BD[8*tau:8*tau+4]}, 0")
        a("s_waitcnt lgkmcnt(0)")
        for tau in range(4):
            a(f"v_mfma_f32_16x16x32_bf16 {D[4*tau:4*tau+4]}, {t[8:12]}, {BD[8*tau+4:8*tau+8]}, {D[4*tau:4*tau+4]}")
        for tau in range(4): a(f"v_mul_f32 {t[12+tau]}, {D[4*tau]}, {t[1]}")
        a(f"v_cvt_pk_bf16_f32 {t[12]}, {t[12]}, {t[13]}")
        a(f"v_cvt_pk_bf16_f32 {t[13]}, {t[14]}, {t[15]}")
        a(f"s_mov_b64 exec, 0xffff")
        a(f"buffer_store_dwordx2 {t[12:14]}, {gP}, {rWS}, {sOff} offen sc1")
        a(f"s_mov_b64 exec, -1")
        stamp()
    if prof:
        dump_stamps(nts[0])
    a("s_endpgm")

    a.hist = []
    a.label("L_helper")
    nts[0] = 1
    for i in range(4): a(f"v_mov_b32 {t[4+i]}, -1")
    a(f"s_sub_u32 {sOff}, s2, {NR + NF}")
    a(f"s_lshl_b32 {sOff}, {sOff}, 13")
    for i in range(HROUNDS):
        a(f"buffer_store_dwordx4 {t[4:8]}, {vT16}, {rWS}, {sOff} offen sc1")
        if i < HROUNDS - 1: a(f"s_add_u32 {sOff}, {sOff}, {NH*8192}")
    a("s_waitcnt vmcnt(0)")
    a("s_barrier")
    a(f"s_cmp_lg_u32 {sJ}, 0"); a("s_cbranch_scc1 L_end")
    a(f"v_mov_b32 {t[0]}, 0"); a(f"v_mov_b32 {t[1]}, 1")
    a(f"s_mov_b64 exec, 1")
    a(f"buffer_atomic_add {t[1]}, {t[0]}, {rDBG}, 0 offen sc1")
    if prof:
        a("s_waitcnt vmcnt(0)")
        stamp()
        dump_stamps(2)
    a.label("L_end")
    a("s_endpgm")

    nv = max(vmaxR, vmaxF)
    assert nv <= 256, nv
    hdr = open("interleave_layers__spectral_fnet__moe_arch_mod__prompt.s.ref").read().split("; Override")[0]
    txt = hdr + f"""; @launch grid=({NWG},1,1) block=(512,1,1) lds={LDS_BYTES}
.amdgcn_target "amdgcn-amd-amdhsa--gfx950"
.text
.globl {KN}
.p2align 8
.type {KN},@function
{KN}:
""" + a.text() + f""".section .rodata,"a"
.p2align 6
.amdhsa_kernel {KN}
  .amdhsa_next_free_vgpr 256
  .amdhsa_next_free_sgpr 102
  .amdhsa_accum_offset 256
  .amdhsa_group_segment_fixed_size 0
  .amdhsa_kernarg_size 104
  .amdhsa_user_sgpr_count 2
  .amdhsa_user_sgpr_kernarg_segment_ptr 1
  .amdhsa_system_sgpr_workgroup_id_x 1
.end_amdhsa_kernel
"""
    return txt, dict(vR=vmaxR, vF=vmaxF, sn=a.sn, nops=a.nops, lines=len(a.lines))

if __name__ == "__main__":
    txt, info = build(prof=False)
    open("k.s", "w").write(txt)
    print(info)
    txt, info = build(prof=True)
    open("kp.s", "w").write(txt)
    open("kd.s", "w").write(build(prof=True, opts=dict(dbgwg=28))[0])
    open("kdf.s", "w").write(build(prof=True, opts=dict(dbgwg=F0+3))[0])
```
